```python
import torch

def _softmax(x, axis=-1):
    return torch.softmax(x, dim=axis)
def _gelu(x):
    return torch.nn.functional.gelu(x, approximate="tanh")
def _silu(x):
    return torch.nn.functional.silu(x)
def _sigmoid(x):
    return torch.sigmoid(x)
def _layernorm(x, axis=-1, eps=1e-5):
    m = x.mean(dim=axis, keepdim=True)
    v = x.var(dim=axis, keepdim=True, unbiased=False)
    return (x - m) / torch.sqrt(v + eps)
def _scatter_add(tgt, idx, src, axis=0):
    return tgt.clone().index_add_(axis, idx, src)
def _segment_sum(src, seg, n):
    out = torch.zeros((n,) + src.shape[1:], dtype=src.dtype)
    return out.index_add_(0, seg, src)
def _pad(x, pw):
    flat = tuple(v for pair in reversed(pw) for v in pair)
    return torch.nn.functional.pad(x, flat)

kernel_name = 'parallel_sum__linear_attn_block__glu_gated_bilinear__prompt'

def setup_inputs():

    _w = (lambda a: (lambda t: t.to(torch.bfloat16) if t.is_floating_point() else t)(torch.as_tensor(a)))
    def _A_setup():
        B, S, D = 1, 2048, 512
        return {
            "x": _w((lambda *s: torch.randn(*s, dtype=torch.bfloat16) * 0.05)(B, S, D)),
            "wqkv": _w((lambda *s: torch.randn(*s, dtype=torch.bfloat16) * 0.05)(D, 3 * D)),
            "wo": _w((lambda *s: torch.randn(*s, dtype=torch.bfloat16) * 0.05)(D, D)),
        }
    _A_in = _A_setup()

    def _B_setup():
        B, S, D, F = 1, 2048, 512, 1792
        return {
            "x": _w((lambda *s: torch.randn(*s, dtype=torch.bfloat16) * 0.05)(B, S, D)),
            "w_gate": _w((lambda *s: torch.randn(*s, dtype=torch.bfloat16) * 0.2)(D, F) * (D ** -0.5)),
            "w_up": _w((lambda *s: torch.randn(*s, dtype=torch.bfloat16) * 0.2)(D, F) * (D ** -0.5)),
            "w_down": _w((lambda *s: torch.randn(*s, dtype=torch.bfloat16) * 0.2)(F, D) * (F ** -0.5)),
        }
    _B_in = _B_setup()

    return {
        "A_x": _A_in["x"],
        "A_wqkv": _A_in["wqkv"],
        "A_wo": _A_in["wo"],
        "B_x": _B_in["x"],
        "B_w_gate": _B_in["w_gate"],
        "B_w_up": _B_in["w_up"],
        "B_w_down": _B_in["w_down"],
    }

def reference(A_x, A_wqkv, A_wo, B_x, B_w_gate, B_w_up, B_w_down):
    def _A_ref(x, wqkv, wo):
        B, S, D = x.shape
        H = 32; Dh = D // H
        qkv = (lambda x, *d: x.permute(*d))((x @ wqkv).reshape(B, S, 3, H, Dh), 2, 0, 3, 1, 4)
        q, k, v = qkv[0], qkv[1], qkv[2]
        phi = lambda t: torch.where(t > 0, t + 1, torch.exp(t)) + 1e-6
        pq, pk = phi(q), phi(k)
        kv = torch.einsum("bhsd,bhse->bhde", pk, v)
        z = torch.einsum("bhsd->bhd", pk)
        num = torch.einsum("bhqd,bhde->bhqe", pq, kv)
        den = torch.einsum("bhqd,bhd->bhq", pq, z)[..., None] + 1e-6
        o = num / den
        return (lambda x, *d: x.permute(*d))(o, 0, 2, 1, 3).reshape(B, S, D) @ wo

    def _B_ref(x, w_gate, w_up, w_down):
        g = torch.einsum("bsd,df->bsf", x, w_gate)
        u = torch.einsum("bsd,df->bsf", x, w_up)
        h = g * u
        return torch.einsum("bsf,fd->bsd", h, w_down)

    x = A_x
    xn = _layernorm(x, axis=-1)
    return x + _A_ref(xn, A_wqkv, A_wo) + _B_ref(xn, B_w_gate, B_w_up, B_w_down)
```

```python
import re

REG_RE = re.compile(r'^(v|a|s)(\d+)$')
RANGE_RE = re.compile(r'^(v|a|s)\[(\d+):(\d+)\]$')

def regs_of(tok):
    tok = tok.strip()
    neg = tok.lstrip('-')
    if neg.startswith('abs(') or neg.startswith('|'):
        neg = neg.replace('abs(', '').replace(')', '').replace('|', '')
    tok = neg
    m = REG_RE.match(tok)
    if m: return {(m.group(1), int(m.group(2)))}
    m = RANGE_RE.match(tok)
    if m: return {(m.group(1), i) for i in range(int(m.group(2)), int(m.group(3)) + 1)}
    if tok in ('vcc', 'vcc_lo', 'vcc_hi'): return {('vcc', 0)}
    if tok in ('exec', 'exec_lo', 'exec_hi'): return {('exec', 0)}
    if tok == 'm0': return {('m0', 0)}
    if tok == 'scc': return {('scc', 0)}
    return set()

TRANS = ('v_exp_f32', 'v_log_f32', 'v_rcp_f32', 'v_rsq_f32', 'v_sqrt_f32', 'v_sin_f32', 'v_cos_f32')

class Ins:
    __slots__ = ('text', 'mn', 'ops', 'kind', 'rd', 'wr', 'comment')
    def __init__(self, text):
        self.text = text
        t = text.split(';')[0].strip()
        self.comment = None
        parts = t.split(None, 1)
        self.mn = parts[0] if parts else ''
        rest = parts[1] if len(parts) > 1 else ''
        ops = []; cur = ''; depth = 0
        for ch in rest:
            if ch == '[': depth += 1
            if ch == ']': depth -= 1
            if ch == ',' and depth == 0: ops.append(cur.strip()); cur = ''
            else: cur += ch
        if cur.strip(): ops.append(cur.strip())
        mods = []
        if ops:
            sp = ops[-1].split()
            ops[-1] = sp[0]; mods = sp[1:]
        self.ops = ops
        self.classify(mods)
    def classify(self, mods):
        mn = self.mn; ops = self.ops
        rd = set(); wr = set(); kind = 'other'
        R = lambda i: regs_of(ops[i]) if i < len(ops) else set()
        if mn.endswith(':') or mn.startswith('.') or mn == '':
            kind = 'label' if mn.endswith(':') else 'dir'
        elif mn.startswith('v_mfma'):
            kind = 'mfma'; wr = R(0); rd = R(1) | R(2) | R(3)
        elif mn.startswith('v_cmp'):
            kind = 'valu'; wr = R(0); rd = R(1) | R(2)
        elif mn in ('v_readfirstlane_b32', 'v_readlane_b32'):
            kind = 'valu'; wr = R(0); rd = R(1) | R(2)
        elif mn.startswith('v_permlane') and 'swap' in mn:
            kind = 'valu'; wr = R(0) | R(1); rd = R(0) | R(1)
        elif mn.startswith('v_'):
            kind = 'valu'; wr = R(0)
            for i in range(1, len(ops)): rd |= R(i)
            if mn.startswith(('v_fmac', 'v_dot2c', 'v_pk_fmac', 'v_writelane')): rd |= R(0)
            if mn.startswith(('v_add_co', 'v_sub_co', 'v_addc_co', 'v_subb_co')):
                wr |= R(1); rd = set()
                for i in range(2, len(ops)): rd |= R(i)
            if mn.startswith('v_cndmask') and len(ops) == 3: rd |= {('vcc', 0)}
            if mn.startswith('v_accvgpr_read'): pass
        elif mn.startswith('ds_read') or mn.startswith('ds_bpermute') or mn.startswith('ds_swizzle'):
            kind = 'ds'; wr = R(0)
            for i in range(1, len(ops)): rd |= R(i)
        elif mn.startswith('ds_'):
            kind = 'ds'
            for i in range(len(ops)): rd |= R(i)
        elif mn.startswith('buffer_load'):
            kind = 'vmem'
            if 'lds' in mods or any(o.endswith(' lds') for o in ops):
                kind = 'dma'
                for i in range(len(ops)): rd |= R(i)
                rd |= {('m0', 0)}
            else:
                wr = R(0)
                for i in range(1, len(ops)): rd |= R(i)
        elif mn.startswith('buffer_store') or mn.startswith('buffer_atomic'):
            kind = 'vmem_st'
            for i in range(len(ops)): rd |= R(i)
            if 'sc0' in mods and mn.startswith('buffer_atomic'): wr = R(0)
        elif mn.startswith('global_load_lds'):
            kind = 'dma'
            for i in range(len(ops)): rd |= R(i)
            rd |= {('m0', 0)}
        elif mn.startswith('global_load'):
            kind = 'vmem'; wr = R(0)
            for i in range(1, len(ops)): rd |= R(i)
        elif mn.startswith('global_store') or mn.startswith('global_atomic'):
            kind = 'vmem_st'
            for i in range(len(ops)): rd |= R(i)
        elif mn == 's_nop':
            kind = 'nop'
        elif mn in ('s_waitcnt', 's_barrier', 's_sleep', 's_endpgm', 's_setprio'):
            kind = 'sctl'
        elif mn.startswith('s_cbranch') or mn == 's_branch':
            kind = 'branch'
            if 'vcc' in mn: rd = {('vcc', 0)}
            if 'exec' in mn: rd = {('exec', 0)}
        elif mn.startswith('s_load') or mn.startswith('s_memtime') or mn.startswith('s_memrealtime') or mn.startswith('s_buffer_load'):
            kind = 'smem'; wr = R(0)
            for i in range(1, len(ops)): rd |= R(i)
        elif mn.startswith('s_cmp') or mn.startswith('s_bitcmp'):
            kind = 'salu'
            for i in range(len(ops)): rd |= R(i)
        elif mn.startswith('s_'):
            kind = 'salu'; wr = R(0)
            for i in range(1, len(ops)): rd |= R(i)
            if 'saveexec' in mn: wr |= {('exec', 0)}; rd |= {('exec', 0)}
            if mn.startswith(('s_addk', 's_mulk')): rd |= R(0)
        self.kind = kind; self.rd = rd; self.wr = wr
    def states(self):
        if self.kind in ('label', 'dir'): return 0
        if self.kind == 'nop': return int(self.ops[0], 0) + 1
        return 1

def need(prev, cur):
    n = 0
    pk, ck = prev.kind, cur.kind
    vwr = {r for r in prev.wr if r[0] in 'va' and r[0] != 'vcc'}
    vwr = {r for r in prev.wr if r[0] in ('v', 'a')}
    swr = {r for r in prev.wr if r[0] in ('s', 'vcc')}
    crd = cur.rd; cwr = cur.wr
    if pk == 'valu':
        if ck == 'mfma' and vwr & crd: n = max(n, 2)
        if ck == 'valu':
            if prev.mn.replace('_e32', '').replace('_e64', '') in TRANS and vwr & crd and cur.mn.replace('_e32', '').replace('_e64', '') not in TRANS: n = max(n, 1)
            if prev.mn.replace('_e32', '').replace('_e64', '') in TRANS and vwr & crd: n = max(n, 1)
            if swr & crd: n = max(n, 2)
            if cur.mn in ('v_readfirstlane_b32', 'v_readlane_b32') and vwr & crd: n = max(n, 1)
            if cur.mn.startswith('v_permlane') and vwr & crd: n = max(n, 2)
            if ('dpp' in cur.text or 'row_' in cur.text or 'quad_perm' in cur.text) and vwr & crd: n = max(n, 2)
            if cur.mn in ('v_readlane_b32', 'v_writelane_b32') and swr & crd: n = max(n, 4)
            if prev.mn.startswith('v_dot') and vwr & (crd | cwr):
                same = prev.mn == cur.mn
                if same:
                    srcc = cur.wr if cur.mn.startswith('v_dot2c') else regs_of(cur.ops[3]) if len(cur.ops) > 3 else set()
                    srcab = (regs_of(cur.ops[1]) | regs_of(cur.ops[2]))
                    if vwr & srcab: n = max(n, 3)
                    elif (vwr & cwr) and not (vwr & srcc): n = max(n, 3)
                else:
                    n = max(n, 3)
        if ck in ('vmem', 'vmem_st', 'dma') and swr & crd: n = max(n, 5)
        if ck in ('salu', 'branch') and swr & crd: n = max(n, 4)
        if prev.mn.startswith('v_dot') and ck in ('mfma', 'ds', 'vmem', 'vmem_st', 'dma') and vwr & crd: n = max(n, 3)
    if pk == 'mfma':
        if ck == 'mfma':
            d = prev.wr
            a_b = regs_of(cur.ops[1]) | regs_of(cur.ops[2])
            c = regs_of(cur.ops[3])
            if d & a_b: n = max(n, 12)
            if d & c and d != c: n = max(n, 10)
            if d & cur.wr and not (d == c): n = max(n, 12)
        elif ck in ('valu', 'ds', 'vmem', 'vmem_st', 'dma'):
            if prev.wr & (crd | cwr): n = max(n, 12)
            c = regs_of(prev.ops[3])
            if ck == 'valu' and c & cwr: n = max(n, 7)
    if pk == 'salu':
        if ('m0', 0) in prev.wr and ck == 'dma': n = max(n, 1)
        if ('exec', 0) in prev.wr and ck == 'mfma': n = max(n, 4)
    if pk == 'vmem_st' and ('x4' in prev.mn or 'x3' in prev.mn):
        data = regs_of(prev.ops[0]) if prev.mn.startswith('buffer') else regs_of(prev.ops[1])
        if ck == 'valu' and data & cwr: n = max(n, 2)
        elif data & cwr: n = max(n, 1)
    return n

def pad_hazards(lines, maxdist=14):
    out = []
    first_branch = {}
    for ins in lines:
        if ins.kind in ('label', 'dir'):
            out.append(ins); continue
        dist = 0; req = 0
        zero_until = None
        pos = len(out) - 1
        steps = 0
        while pos >= 0 and dist < maxdist and steps < 400:
            p = out[pos]
            if p.kind == 'label':
                nm = p.mn[:-1]
                if nm in first_branch:
                    bp = first_branch[nm]
                    zero_until = bp if zero_until is None else min(zero_until, bp)
            elif p.kind != 'dir':
                r = need(p, ins)
                if r > dist: req = max(req, r - dist)
                if zero_until is None or pos <= zero_until:
                    dist += p.states()
                    if zero_until is not None and pos <= zero_until: zero_until = None
            pos -= 1; steps += 1
        while req > 0:
            k = min(req, 16)
            out.append(Ins('s_nop %d' % (k - 1))); req -= k
        if ins.kind == 'branch' and ins.ops and ins.ops[0] not in first_branch:
            first_branch[ins.ops[0]] = len(out)
        out.append(ins)
    return out

class Em:
    def __init__(self):
        self.L = []
        self.vm_n = 0; self.vm_done = -1; self.vm_tag = {}
        self.lg_n = 0; self.lg_done = -1; self.lg_tag = {}
    def raw(self, text):
        self.L.append(Ins(text))
    def __call__(self, text, tag=None):
        ins = Ins(text)
        self.L.append(ins)
        if ins.kind in ('vmem', 'vmem_st', 'dma'):
            if tag is not None: self.vm_tag[tag] = self.vm_n
            self.vm_n += 1
        elif ins.kind == 'ds':
            if tag is not None: self.lg_tag[tag] = self.lg_n
            self.lg_n += 1
        return ins
    def label(self, name): self.L.append(Ins(name + ':'))
    def vm_idx(self): return self.vm_n - 1
    def lg_idx(self): return self.lg_n - 1
    def wait_vm(self, idx):
        if isinstance(idx, str): idx = self.vm_tag[idx]
        if idx <= self.vm_done: return
        n = self.vm_n - 1 - idx
        assert n >= 0
        n = min(n, 63)
        self.L.append(Ins('s_waitcnt vmcnt(%d)' % n))
        self.vm_done = self.vm_n - 1 - n
    def wait_lg(self, idx):
        if isinstance(idx, str): idx = self.lg_tag[idx]
        if idx <= self.lg_done: return
        n = self.lg_n - 1 - idx
        assert n >= 0
        n = min(n, 15)
        self.L.append(Ins('s_waitcnt lgkmcnt(%d)' % n))
        self.lg_done = self.lg_n - 1 - n
    def wait_all(self):
        self.L.append(Ins('s_waitcnt vmcnt(0) lgkmcnt(0)'))
        self.vm_done = self.vm_n - 1; self.lg_done = self.lg_n - 1
    def fork(self):
        e = Em()
        e.vm_n, e.vm_done, e.vm_tag = self.vm_n, self.vm_done, dict(self.vm_tag)
        e.lg_n, e.lg_done, e.lg_tag = self.lg_n, self.lg_done, dict(self.lg_tag)
        return e
    def text(self, pad=True):
        L = pad_hazards(self.L) if pad else self.L
        return '\n'.join(('' if i.kind == 'label' else '  ') + i.text for i in L)
```

```python
import sys, os
sys.path.insert(0, os.path.dirname(os.path.abspath(__file__)))
from emit import Em, Ins, pad_hazards

NAME = 'parallel_sum__linear_attn_block__glu_gated_bilinear__prompt_kernel'

H_OFF = 0
H_RT = 144 * 1024
KV_OFF = 10 << 20
FLG_OFF = KV_OFF + 65536
KVF_OFF = FLG_OFF + 64 * 128
WS_BYTES = 11 << 20

SLOT = 16384
NSLOT = 10

S_X, S_QKV, S_WO, S_WG, S_WU, S_WD, S_OUT, S_WS, S_DBG = 8, 12, 16, 20, 24, 28, 32, 36, 40
sWave = 44
sLdsW = 45
sXb = 46
sA = 47
sB = 48
sC = 49
sW2 = 50
sWO = 51
sHst = 52
sKA = 53
sKB = 54
sKC = 55
sHld = 56
sHlo = 57
sRB = 58
sHG = 59
sQ4 = 60
sRT = 61
sCT = 62
sLo = 63
sHi = 64
sOnes = 65
sT0, sT1, sT2, sT3 = 66, 67, 68, 69
sKVb = 70
sFlagOwn = 71
sSpin = 72
sEx = 74
sArg = 76
sCmp = 96

vL16 = 1
vDX0, vDX1 = 2, 3
vDGU0, vDGU1 = 4, 5
vDKV = 6
vDH0, vDH1 = 7, 8
vDW2 = 9
vPGU, vPKV, vPH, vPW2, vPX = 10, 11, 12, 13, 14
vR = [15, 16, 17, 18]
vRW = [19, 20]
vNM = 21
vRS = 22
vRS2 = 24
vSUM = [26, 27, 28, 29]
vLane = 30
vT = list(range(32, 64))
ACC = 64
XF = 128
AW1 = 0
AW2 = 32
LA = 6

def vr(b, n=1): return 'v%d' % b if n == 1 else 'v[%d:%d]' % (b, b + n - 1)
def ar(b, n=1): return 'a%d' % b if n == 1 else 'a[%d:%d]' % (b, b + n - 1)
def sr(b, n=1): return 's%d' % b if n == 1 else 's[%d:%d]' % (b, b + n - 1)

EARLY_REL = [0, 1, 2, 3, 4, 5, 6, 7, 8, 9, 10, 11, 16, 17, 18, 19, 20, 21, 22, 23, 24, 25, 26, 27]
LATE_REL = [12, 13, 14, 15]

class Dma:
    def __init__(self, srd, voff, sbase, soff, ldsq):
        self.srd, self.voff, self.sbase, self.soff, self.ldsq = srd, voff, sbase, soff, ldsq

class Item:
    def __init__(self, name, kind, dmas):
        self.name, self.kind, self.dmas = name, kind, dmas
        self.slot = None; self.issued = 0; self.last_vm = None

def x_item(c):
    return Item('x%d' % c, 'x', [Dma(S_X, vDX0 if i % 2 == 0 else vDX1, sXb, i * 8192 + c * 128, i * 1024) for i in range(4)])
def gu_item(nm, sbase, p):
    return Item('%s%d' % (nm, p), 'w', [Dma(S_WG if i < 2 else S_WU, vDGU0 if i < 2 else vDGU1, sbase, (64 * p + 8 * (i & 1)) * 3584, i * 1024) for i in range(4)])
def kv_item(sbase, p):
    return Item('kv%d' % p, 'w', [Dma(S_QKV, vDKV, sbase, (64 * p + 8 * (i & 1)) * 3072 + (1024 if i >= 2 else 0), i * 1024) for i in range(4)])
def q_item(sbase, p):
    return Item('q%d' % p, 'w', [Dma(S_QKV, vDKV, sbase, (128 * p + 16 * (i >> 1) + 8 * (i & 1)) * 3072, i * 1024) for i in range(4)])
def half_item(sbase, p):
    return Item('hf%d' % p, 'w', [Dma(S_WG if (i & 1) == 0 else S_WU, vDH0 if (i & 1) == 0 else vDH1, sbase, (128 * p + 16 * (i >> 1)) * 3584, i * 1024) for i in range(4)])
def w2_item(v):
    d = []
    for i in range(4):
        step = 2 * v + (i >> 1)
        if step < 24: d.append(Dma(S_WD, vDW2, sW2, EARLY_REL[step] * 16384 + (i & 1) * 8192, i * 1024))
        elif step < 28: d.append(Dma(S_WD, vDW2, sW2, LATE_REL[step - 24] * 16384 + (i & 1) * 8192, i * 1024))
        else: d.append(Dma(S_WO, vDW2, sWO, (step - 28) * 16384 + (i & 1) * 8192, i * 1024))
    return Item('V%d' % v, 'v', d)

def emit_dma(e, it, i, tag=None):
    d = it.dmas[i]
    e('s_add_u32 m0, %s, %d' % (sr(sLdsW), it.slot * SLOT + d.ldsq))
    if d.soff == 0:
        so = sr(d.sbase)
        e('s_nop 0')
    else:
        e('s_add_u32 %s, %s, %d' % (sr(sT0), sr(d.sbase), d.soff)); so = sr(sT0)
    e('buffer_load_dwordx4 %s, %s, %s offen lds' % (vr(d.voff), sr(d.srd, 4), so))
    it.issued = i + 1
    it.last_vm = e.vm_idx()

def srd(e, dst, ptr, nbytes):
    e('s_mov_b32 %s, %s' % (sr(dst), sr(ptr)))
    e('s_and_b32 %s, %s, 0xffff' % (sr(dst + 1), sr(ptr + 1)))
    e('s_mov_b32 %s, 0x%x' % (sr(dst + 2), nbytes))
    e('s_mov_b32 %s, 0x20000' % sr(dst + 3))

def prologue(e, cfg):
    e('s_cmp_ge_u32 s2, 256')
    e('s_cbranch_scc1 L_end')
    e('s_load_dwordx16 %s, s[0:1], 0' % sr(sArg, 16))
    e('s_load_dwordx4 %s, s[0:1], 64' % sr(sArg + 16, 4))
    e('v_and_b32 %s, 63, v0' % vr(vLane))
    e('v_lshrrev_b32 %s, 6, v0' % vr(vT[0]))
    e('v_lshlrev_b32 %s, 4, %s' % (vr(vL16), vr(vLane)))
    e('v_readfirstlane_b32 %s, %s' % (sr(sWave), vr(vT[0])))
    e('v_lshrrev_b32 %s, 3, %s' % (vr(vT[1]), vr(vLane)))
    e('v_and_b32 %s, 7, %s' % (vr(vT[2]), vr(vLane)))
    e('v_lshrrev_b32 %s, 4, %s' % (vr(vT[3]), vr(vLane)))
    e('v_xor_b32 %s, %s, %s' % (vr(vT[4]), vr(vT[2]), vr(vT[3])))
    e('v_lshlrev_b32 %s, 4, %s' % (vr(vT[4]), vr(vT[4])))
    e('v_lshl_add_u32 %s, %s, 10, %s' % (vr(vDX0), vr(vT[1]), vr(vT[4])))
    e('v_xor_b32 %s, 64, %s' % (vr(vDX1), vr(vDX0)))
    e('s_and_b32 %s, s2, 7' % sr(sT0))
    e('s_lshr_b32 %s, s2, 3' % sr(sT1))
    e('s_and_b32 %s, %s, 1' % (sr(sRB), sr(sT0)))
    e('s_lshl_b32 %s, %s, 3' % (sr(sRB), sr(sRB)))
    e('s_and_b32 %s, %s, 7' % (sr(sT2), sr(sT1)))
    e('s_add_u32 %s, %s, %s' % (sr(sRB), sr(sRB), sr(sT2)))
    e('s_lshr_b32 %s, %s, 3' % (sr(sQ4), sr(sT1)))
    e('s_lshr_b32 %s, %s, 1' % (sr(sT3), sr(sT0)))
    e('s_lshl_b32 %s, %s, 2' % (sr(sRT), sr(sT0)))
    e('s_add_u32 %s, %s, %s' % (sr(sRT), sr(sRT), sr(sQ4)))
    e('s_mov_b32 %s, %s' % (sr(sCT), sr(sT2)))
    e('s_lshr_b32 %s, %s, 1' % (sr(sHG), sr(sQ4)))
    e('s_lshl_b32 %s, %s, 1' % (sr(sT2), sr(sT3)))
    e('s_add_u32 %s, %s, %s' % (sr(sHG), sr(sHG), sr(sT2)))
    e('s_lshl_b32 %s, %s, 12' % (sr(sLdsW), sr(sWave)))
    e('s_lshl_b32 %s, %s, 17' % (sr(sXb), sr(sRB)))
    e('s_lshl_b32 %s, %s, 15' % (sr(sT2), sr(sWave)))
    e('s_add_u32 %s, %s, %s' % (sr(sXb), sr(sXb), sr(sT2)))
    e('s_mov_b32 %s, %s' % (sr(sSpin), sr(sT3)))
    e('s_waitcnt lgkmcnt(0)')
    srd(e, S_X, sArg + 0, 2048 * 1024)

    xit = [x_item(c) for c in range(8)]
    e('s_getpc_b64 %s' % sr(sCmp, 2))
    e.label('L_pc')
    e('s_lshr_b32 %s, s2, 3' % sr(sT0))
    e('s_lshl_b32 %s, %s, 2' % (sr(sT0), sr(sT0)))
    e('s_add_u32 %s, %s, %s' % (sr(sT0), sr(sT0), sr(sWave)))
    e('s_lshl_b32 %s, %s, 10' % (sr(sT0), sr(sT0)))
    e('s_cmp_ge_u32 %s, L_codeend-L_pc' % sr(sT0))
    e('s_cbranch_scc1 L_nowarm')
    e.raw('v_add_u32 %s, %s, %s' % (vr(vT[5]), sr(sT0), vr(vL16)))
    e.raw('global_load_dwordx4 %s, %s, %s' % (vr(ACC, 4), vr(vT[5]), sr(sCmp, 2)))
    e.label('L_nowarm')
    for c in range(8):
        xit[c].slot = 2 + c
        for i in range(4): emit_dma(e, xit[c], i)
    srd(e, S_QKV, sArg + 2, 512 * 3072)
    srd(e, S_WO, sArg + 4, 512 * 1024)
    srd(e, S_WG, sArg + 8, 512 * 3584)
    srd(e, S_WU, sArg + 10, 512 * 3584)
    srd(e, S_WD, sArg + 12, 1792 * 1024)
    srd(e, S_OUT, sArg + 14, 2048 * 1024)
    srd(e, S_DBG, sArg + 16, 256)
    srd(e, S_WS, sArg + 18, WS_BYTES)
    e('s_mov_b32 %s, 0x00003f80' % sr(sLo))
    e('s_mov_b32 %s, 0x3f800000' % sr(sHi))
    e('s_mov_b32 %s, 0x3f803f80' % sr(sOnes))
    t = vT
    e('v_and_b32 %s, 1, %s' % (vr(t[4]), vr(t[3])))
    e('v_lshlrev_b32 %s, 1, %s' % (vr(t[5]), vr(t[4])))
    e('v_xor_b32 %s, %s, %s' % (vr(t[5]), vr(t[2]), vr(t[5])))
    e('v_lshlrev_b32 %s, 4, %s' % (vr(t[5]), vr(t[5])))
    e('v_mul_u32_u24 %s, 3584, %s' % (vr(t[6]), vr(t[1])))
    e('v_add_u32 %s, %s, %s' % (vr(vDGU0), vr(t[6]), vr(t[5])))
    e('v_xor_b32 %s, 64, %s' % (vr(t[5]), vr(t[5])))
    e('v_add_u32 %s, %s, %s' % (vr(vDGU1), vr(t[6]), vr(t[5])))
    e('v_lshlrev_b32 %s, 2, %s' % (vr(t[5]), vr(t[4])))
    e('v_xor_b32 %s, %s, %s' % (vr(t[5]), vr(t[2]), vr(t[5])))
    e('v_lshlrev_b32 %s, 4, %s' % (vr(t[5]), vr(t[5])))
    e('v_mul_u32_u24 %s, 3072, %s' % (vr(t[6]), vr(t[1])))
    e('v_add_u32 %s, %s, %s' % (vr(vDKV), vr(t[6]), vr(t[5])))
    e('v_lshl_add_u32 %s, %s, 10, %s' % (vr(vDW2), vr(t[1]), vr(t[5])))
    e('v_lshrrev_b32 %s, 2, %s' % (vr(t[5]), vr(vLane)))
    e('v_mul_u32_u24 %s, 3584, %s' % (vr(t[6]), vr(t[5])))
    e('v_and_b32 %s, 3, %s' % (vr(t[7]), vr(vLane)))
    e('v_lshl_add_u32 %s, %s, 4, %s' % (vr(vDH0), vr(t[7]), vr(t[6])))
    e('v_xor_b32 %s, 32, %s' % (vr(vDH1), vr(vDH0)))
    e('v_bfe_u32 %s, %s, 2, 2' % (vr(t[8]), vr(vLane)))
    e('v_lshrrev_b32 %s, 5, %s' % (vr(t[9]), vr(vLane)))
    e('v_and_b32 %s, 1, %s' % (vr(t[10]), vr(t[1])))
    e('v_lshl_add_u32 %s, %s, 3, %s' % (vr(t[11]), vr(t[9]), vr(t[8])))
    e('v_lshl_add_u32 %s, %s, 2, %s' % (vr(t[12]), vr(t[9]), vr(t[8])))
    e('v_lshlrev_b32 %s, 3, %s' % (vr(t[13]), vr(t[7])))
    e('v_lshl_add_u32 %s, %s, 1, %s' % (vr(t[14]), vr(t[4]), vr(t[10])))
    e('v_lshl_add_u32 %s, %s, 5, %s' % (vr(t[14]), vr(t[14]), vr(t[13])))
    e('v_lshl_add_u32 %s, %s, 7, %s' % (vr(t[14]), vr(t[11]), vr(t[14])))
    e('v_lshl_add_u32 %s, %s, 11, %s' % (vr(vPGU), vr(t[4]), vr(t[14])))
    e('v_lshl_add_u32 %s, %s, 5, %s' % (vr(t[14]), vr(t[4]), vr(t[13])))
    e('v_lshlrev_b32 %s, 6, %s' % (vr(t[15]), vr(t[10])))
    e('v_xor_b32 %s, %s, %s' % (vr(t[14]), vr(t[14]), vr(t[15])))
    e('v_lshl_add_u32 %s, %s, 7, %s' % (vr(vPKV), vr(t[11]), vr(t[14])))
    e('v_lshl_add_u32 %s, %s, 7, %s' % (vr(vPW2), vr(t[12]), vr(t[14])))
    e('v_add_u32 %s, %s, %s' % (vr(vPW2), sr(sLdsW), vr(vPW2)))
    e('v_lshl_add_u32 %s, %s, 5, %s' % (vr(t[14]), vr(t[4]), vr(t[13])))
    e('v_lshl_add_u32 %s, %s, 6, %s' % (vr(t[14]), vr(t[11]), vr(t[14])))
    e('v_lshl_add_u32 %s, %s, 10, %s' % (vr(vPH), vr(t[4]), vr(t[14])))
    e('v_and_b32 %s, 31, %s' % (vr(t[14]), vr(vLane)))
    e('v_bfe_u32 %s, %s, 1, 3' % (vr(t[15]), vr(vLane)))
    e('v_xor_b32 %s, %s, %s' % (vr(t[15]), vr(t[15]), vr(t[9])))
    e('v_lshlrev_b32 %s, 4, %s' % (vr(t[15]), vr(t[15])))
    e('v_lshl_add_u32 %s, %s, 7, %s' % (vr(vPX), vr(t[14]), vr(t[15])))
    e('v_add_u32 %s, %s, %s' % (vr(vPX), sr(sLdsW), vr(vPX)))
    st = sSpin
    e('s_mul_i32 %s, %s, %d' % (sr(sW2), sr(sWave), 28 * 16384))
    e('s_lshl_b32 %s, %s, 7' % (sr(sT0), sr(sCT)))
    e('s_add_u32 %s, %s, %s' % (sr(sW2), sr(sW2), sr(sT0)))
    e('s_lshl_b32 %s, %s, 17' % (sr(sWO), sr(sWave)))
    e('s_add_u32 %s, %s, %s' % (sr(sWO), sr(sWO), sr(sT0)))
    e('s_mul_i32 %s, %s, %d' % (sr(sT0), sr(sRT), 2 * H_RT))
    e('s_mul_i32 %s, %s, %d' % (sr(sHld), sr(sWave), 28 * 1024))
    e('s_add_u32 %s, %s, %s' % (sr(sHld), sr(sHld), sr(sT0)))
    e('s_lshl_b32 %s, %s, 13' % (sr(sHlo), sr(sWave)))
    e('s_add_u32 %s, %s, %s' % (sr(sHlo), sr(sHlo), sr(sT0)))
    e('s_add_u32 %s, %s, %d' % (sr(sHlo), sr(sHlo), 112 * 1024))
    e('s_lshl_b32 %s, %s, 2' % (sr(sT0), sr(sRB)))
    e('s_add_u32 %s, %s, %s' % (sr(sT0), sr(sT0), sr(sWave)))
    e('s_mul_i32 %s, %s, %d' % (sr(sHst), sr(sT0), H_RT))
    e('s_lshl_b32 %s, %s, 13' % (sr(sKVb), sr(sHG)))
    e('s_add_u32 %s, %s, %d' % (sr(sKVb), sr(sKVb), KV_OFF))
    e('s_lshl_b32 %s, %s, 2' % (sr(sT0), sr(sRB)))
    e('s_add_u32 %s, %s, %s' % (sr(sT0), sr(sT0), sr(st)))
    e('s_lshl_b32 %s, %s, 7' % (sr(sT0), sr(sT0)))
    e('s_lshl_b32 %s, %s, 2' % (sr(sT1), sr(sQ4)))
    e('s_add_u32 %s, %s, %s' % (sr(sFlagOwn), sr(sT0), sr(sT1)))
    e('s_add_u32 %s, %s, %d' % (sr(sFlagOwn), sr(sFlagOwn), FLG_OFF))
    e('s_mul_i32 %s, %s, 448' % (sr(sT2), sr(st)))
    return xit


MASK16 = 84
sEps = 86
sPoll = 87

class Path:
    def __init__(self, e, typ, cfg, xit):
        self.e, self.typ, self.cfg, self.xit = e, typ, cfg, xit
        self.lab = typ
        self.nlab = 0
    def L(self, nm):
        self.nlab += 1
        return 'L_%s_%s_%d' % (self.typ, nm, self.nlab)

    def w0_begin(self):
        e = self.e; lab = self.L('w0')
        e('s_cmp_lg_u32 %s, 0' % sr(sWave)); e('s_cbranch_scc1 %s' % lab)
        return lab
    def w0_end(self, lab): self.e.label(lab)

    def store_flag(self, soff_sreg, val, extra=0):
        e = self.e; lab = self.w0_begin()
        e('s_mov_b64 exec, 1')
        e('v_mov_b32 %s, %d' % (vr(vT[30]), extra)); e('v_mov_b32 %s, %d' % (vr(vT[31]), val))
        e.raw('buffer_store_dword %s, %s, %s, %s offen sc1' % (vr(vT[31]), vr(vT[30]), sr(S_WS, 4), sr(soff_sreg)))
        e('s_mov_b64 exec, -1')
        self.w0_end(lab)

    def poll_addr(self, kind):
        e = self.e
        va = vr(vT[29])
        if kind == 'cnt':
            e('v_mov_b32 %s, 0' % va); return S_DBG, '0', 1
        if kind == 'kv':
            e('v_lshlrev_b32 %s, 2, %s' % (va, vr(vLane)))
            e('s_lshl_b32 %s, %s, 7' % (sr(sPoll), sr(sHG))); e('s_add_u32 %s, %s, %d' % (sr(sPoll), sr(sPoll), KVF_OFF))
            return S_WS, sr(sPoll), 16
        e('v_lshrrev_b32 %s, 2, %s' % (va, vr(vLane))); e('v_lshlrev_b32 %s, 7, %s' % (va, va))
        e('v_and_b32 %s, 3, %s' % (vr(vT[28]), vr(vLane))); e('v_lshl_add_u32 %s, %s, 2, %s' % (va, vr(vT[28]), va))
        e('s_lshr_b32 %s, %s, 1' % (sr(sPoll), sr(sRT))); e('s_lshl_b32 %s, %s, 9' % (sr(sPoll), sr(sPoll)))
        e('s_add_u32 %s, %s, %d' % (sr(sPoll), sr(sPoll), FLG_OFF))
        return S_WS, sr(sPoll), 16
    def poll_issue(self, kind):
        e = self.e; lab = self.w0_begin()
        srd_, so, n = self.poll_addr(kind)
        e('s_mov_b64 exec, 0x%x' % ((1 << n) - 1))
        e.raw('buffer_load_dword v31, %s, %s, %s offen sc1' % (vr(vT[29]), sr(srd_, 4), so))
        e('s_mov_b64 exec, -1')
        self.w0_end(lab)
        self.poll_pos = e.vm_n
    def poll_check(self, kind):
        e = self.e; lab = self.w0_begin()
        n = min(63, e.vm_n - self.poll_pos)
        e('s_waitcnt vmcnt(%d)' % n)
        nl = 1 if kind == 'cnt' else 16
        full = (1 << nl) - 1
        thr = {'cnt': 256, 'kv': 1, 'early': 1, 'late': 2}[kind]
        loop = self.L('spin'); ok = self.L('ok')
        e('s_mov_b32 %s, 0' % sr(sSpin))
        e('s_mov_b64 exec, 0x%x' % full)
        e.label(loop)
        e('v_mov_b32 %s, %d' % (vr(vT[28]), thr))
        e('v_cmp_le_u32 vcc, %s, v31' % vr(vT[28]))
        e('s_cmp_eq_u64 vcc, 0x%x' % full)
        e('s_cbranch_scc1 %s' % ok)
        e('s_add_u32 %s, %s, 1' % (sr(sSpin), sr(sSpin)))
        e('s_cmp_ge_u32 %s, %d' % (sr(sSpin), self.cfg.get('spin', 20000)))
        e('s_cbranch_scc1 %s' % ok)
        e('s_sleep 1')
        srd_, so, _ = self.poll_addr(kind)
        e.raw('buffer_load_dword v31, %s, %s, %s offen sc1' % (vr(vT[29]), sr(srd_, 4), so))
        e('s_waitcnt vmcnt(0)')
        e('s_branch %s' % loop)
        e.label(ok)
        e('s_mov_b64 exec, -1')
        self.w0_end(lab)

    def set_raddr(self, kind, slot):
        e = self.e
        base = slot * SLOT
        if kind == 'gu':
            e('v_add_u32 %s, %d, %s' % (vr(vR[0]), base, vr(vPGU)))
            for j in range(1, 4): e('v_xor_b32 %s, %d, %s' % (vr(vR[j]), 32 * j, vr(vR[0])))
        elif kind in ('kv', 'q'):
            e('v_add_u32 %s, %d, %s' % (vr(vR[0]), base, vr(vPKV)))
            e('v_xor_b32 %s, 64, %s' % (vr(vR[1]), vr(vR[0])))
        elif kind == 'half':
            e('v_add_u32 %s, %d, %s' % (vr(vR[0]), base, vr(vPH)))
            e('v_xor_b32 %s, 32, %s' % (vr(vR[1]), vr(vR[0])))

    def ts_desc(self, i):
        u = self.units
        if i < 128: kind, loc = u[0], i
        elif i < 256: kind, loc = u[1], i - 128
        else: kind, loc = u[2], i - 256
        if kind in ('gu', 'kv'):
            k, j = loc >> 2, loc & 3
            tq = k & 3
            if kind == 'gu': return kind, k, j, vR[j], tq * 4096, 512
            return kind, k, j, vR[j & 1], tq * 4096 + (j >> 1) * 2048, 512
        k, j = loc >> 1, loc & 1
        kk = k & 7
        if kind == 'q': return kind, k, j, vR[j], kk * 2048, 512
        return kind, k, j, vR[j], kk * 2048, 256

    def reads(self, i):
        e = self.e
        kind, k, j, areg, off, d2 = self.ts_desc(i)
        b = AW1 + (i % 8) * 4
        e('ds_read_b64_tr_b16 %s, %s offset:%d' % (ar(b, 2), vr(areg), off))
        e('ds_read_b64_tr_b16 %s, %s offset:%d' % (ar(b + 2, 2), vr(areg), off + d2), tag='rd%d' % i)

    def mfma(self, i):
        e = self.e
        kind, k, j, areg, off, d2 = self.ts_desc(i)
        b = AW1 + (i % 8) * 4
        acc = vr(ACC + 16 * j, 16)
        c = '0' if k == 0 else acc
        e.wait_lg('rd%d' % i)
        if kind == 'kv':
            e('v_mfma_f32_32x32x16_bf16 %s, %s, %s, %s' % (acc, vr(XF + 4 * k, 4), ar(b, 4), c))
        else:
            e('v_mfma_f32_32x32x16_bf16 %s, %s, %s, %s' % (acc, ar(b, 4), vr(XF + 4 * k, 4), c))

    def norm_instrs(self, k):
        out = []
        T = [vT[0], vT[2], vT[4], vT[6]]
        x = [XF + 4 * k + r for r in range(4)]
        def dot(r): return ['v_dot2_f32_bf16 %s, %s, %s, %s' % (vr(T[r]), vr(x[r]), sr(sLo), vr(vNM)),
                            'v_dot2_f32_bf16 %s, %s, %s, %s' % (vr(T[r] + 1), vr(x[r]), sr(sHi), vr(vNM))]
        def mul(r): return ['v_pk_mul_f32 %s, %s, %s op_sel_hi:[1,0]' % (vr(T[r], 2), vr(T[r], 2), vr(vRS, 2))]
        def cvt(r): return ['v_cvt_pk_bf16_f32 %s, %s, %s' % (vr(x[r]), vr(T[r]), vr(T[r] + 1))]
        out += dot(0) + dot(1) + dot(2) + dot(3)
        out += mul(0) + mul(1) + mul(2) + mul(3) + cvt(0) + cvt(1) + cvt(2) + cvt(3)
        return out

    def ffn_epilogue(self, ntiles, sK):
        e = self.e
        for j in range(ntiles):
            a = ACC + 16 * j
            T = vT[(j & 1) * 16:(j & 1) * 16 + 16]
            for q in range(4): e('v_pk_mul_f32 %s, %s, %s' % (vr(T[2 * q], 2), vr(a + 2 * q, 2), vr(a + 8 + 2 * q, 2)))
            for q in range(4): e('v_cvt_pk_bf16_f32 %s, %s, %s' % (vr(T[8 + q]), vr(T[2 * q]), vr(T[2 * q + 1])))
            e('s_add_u32 %s, %s, %d' % (sr(sT1), sr(sK), j * 1024))
            e('buffer_store_dwordx4 %s, %s, %s, %s offen sc1' % (vr(T[8], 4), vr(vL16), sr(S_WS, 4), sr(sT1)))
        self.last_store = e.vm_idx()

    def phi(self, r):
        e = self.e
        t0, t1 = 26, 27
        return ['v_mul_f32 v%d, 0x3fb8aa3b, %s' % (t0, vr(r)),
                'v_min_f32 v%d, 0, v%d' % (t0, t0),
                'v_exp_f32 v%d, v%d' % (t0, t0),
                'v_max_f32 %s, 0, %s' % (vr(r), vr(r)),
                'v_add_f32 %s, 0x358637bd, %s' % (vr(r), vr(r)),
                'v_add_f32 %s, %s, v%d' % (vr(r), vr(r), t0)]

    def phi_block(self, regs):
        e = self.e
        tm = [26, 27, 28, 29]
        n = len(regs)
        for g in range(0, n, 4):
            rs = regs[g:g + 4]
            for q, r in enumerate(rs): e('v_mul_f32 v%d, 0x3fb8aa3b, %s' % (tm[q], vr(r)))
            for q, r in enumerate(rs): e('v_min_f32 v%d, 0, v%d' % (tm[q], tm[q]))
            for q, r in enumerate(rs): e('v_exp_f32 v%d, v%d' % (tm[q], tm[q]))
            for q, r in enumerate(rs): e('v_max_f32 %s, 0, %s' % (vr(r), vr(r)))
            for q, r in enumerate(rs): e('v_add_f32 %s, 0x358637bd, %s' % (vr(r), vr(r)))
            for q, r in enumerate(rs): e('v_add_f32 %s, %s, v%d' % (vr(r), vr(r), tm[q]))

    def four_way(self, fn, name):
        e = self.e
        labs = [self.L(name + str(w)) for w in range(4)]
        end = self.L(name + 'end')
        e('s_cmp_eq_u32 %s, 1' % sr(sWave)); e('s_cbranch_scc1 %s' % labs[1])
        e('s_cmp_eq_u32 %s, 2' % sr(sWave)); e('s_cbranch_scc1 %s' % labs[2])
        e('s_cmp_eq_u32 %s, 3' % sr(sWave)); e('s_cbranch_scc1 %s' % labs[3])
        st = (e.vm_n, e.vm_done, dict(e.vm_tag), e.lg_n, e.lg_done, dict(e.lg_tag))
        fin = None
        for w in range(4):
            e.vm_n, e.vm_done, e.vm_tag, e.lg_n, e.lg_done, e.lg_tag = st[0], st[1], dict(st[2]), st[3], st[4], dict(st[5])
            e.label(labs[w])
            e('s_nop 7'); e('s_nop 7')
            fn(e, w)
            if w < 3: e('s_branch %s' % end)
            cur = (e.vm_n, e.lg_n)
            assert fin is None or fin == cur, (fin, cur)
            fin = cur
        e.label(end)
        e('s_nop 7'); e('s_nop 7')

    def kv_epilogue(self, slot):
        e = self.e
        for c in range(2):
            self.phi_block([ACC + 16 * c + r for r in range(16)])
            for q in range(8): e('v_cvt_pk_bf16_f32 %s, %s, %s' % (vr(vT[8 * c + q]), vr(ACC + 16 * c + 2 * q), vr(ACC + 16 * c + 2 * q + 1)))
        for c in range(2):
            for q in range(8): e('v_cvt_pk_bf16_f32 %s, %s, %s' % (vr(vT[16 + 8 * c + q]), vr(ACC + 32 + 16 * c + 2 * q), vr(ACC + 32 + 16 * c + 2 * q + 1)))
        for q in range(4): e('v_mov_b32 v%d, %s' % (26 + q, sr(sOnes)))
        for c in range(2):
            for ks in range(2):
                kf = vr(vT[8 * c + 4 * ks], 4); vf = vr(vT[16 + 8 * c + 4 * ks], 4)
                d = vr(ACC + 16 * c, 16); dz = vr(ACC + 32 + 16 * c, 16)
                e('v_mfma_f32_32x32x16_bf16 %s, %s, %s, %s' % (d, kf, vf, '0' if ks == 0 else d))
                e('v_mfma_f32_32x32x16_bf16 %s, %s, v[26:29], %s' % (dz, kf, '0' if ks == 0 else dz))
        for c in range(2):
            for r in range(8):
                e('v_cndmask_b32 %s, %s, %s, %s' % (vr(ACC + 16 * c + r), vr(ACC + 16 * c + 8 + r), vr(ACC + 16 * c + r), sr(MASK16, 2)))
        base = slot * SLOT
        e('v_lshrrev_b32 %s, 5, %s' % (vr(vT[0]), vr(vLane)))
        e('v_lshlrev_b32 %s, 5, %s' % (vr(vT[0]), vr(vT[0])))
        e('s_lshl_b32 %s, %s, 8' % (sr(sT1), sr(sWave)))
        e('s_add_u32 %s, %s, %d' % (sr(sT1), sr(sT1), base))
        e('v_add_u32 %s, %s, %s' % (vr(vT[0]), sr(sT1), vr(vT[0])))
        e('s_mov_b32 exec_lo, 1'); e('s_mov_b32 exec_hi, 1')
        for c in range(2):
            for b in range(2):
                for qd in range(2):
                    e('ds_write_b128 %s, %s offset:%d' % (vr(vT[0]), vr(ACC + 32 + 16 * c + 8 * b + 4 * qd, 4), (c * 2 + b) * 64 + qd * 16))
        e('s_mov_b64 exec, -1')
        def chunk(q): return ACC + 16 * (q >> 1) + 4 * (q & 1)
        def var1(e, w):
            for q in range(4):
                if q == w: continue
                pos = (w - q) & 3
                e('v_add_u32 %s, %d, %s' % (vr(vT[1]), base + q * 4096 + pos * 1024, vr(vL16)))
                e('ds_write_b128 %s, %s' % (vr(vT[1]), vr(chunk(q), 4)))
            e('s_waitcnt lgkmcnt(0)'); e.lg_done = e.lg_n - 1
            e('s_barrier')
            e('v_add_u32 %s, %d, %s' % (vr(vT[1]), base + w * 4096, vr(vL16)))
            for pos in range(1, 4): e('ds_read_b128 %s, %s offset:%d' % (vr(vT[4 * pos], 4), vr(vT[1]), pos * 1024))
            e('s_waitcnt lgkmcnt(0)'); e.lg_done = e.lg_n - 1
            own = chunk(w)
            for r in range(4):
                e('v_add_f32 %s, %s, %s' % (vr(vT[4 + r]), vr(vT[4 + r]), vr(vT[8 + r])))
                e('v_add_f32 %s, %s, %s' % (vr(vT[12 + r]), vr(vT[12 + r]), vr(own + r)))
                e('v_add_f32 %s, %s, %s' % (vr(vT[4 + r]), vr(vT[4 + r]), vr(vT[12 + r])))
            e('v_lshlrev_b32 %s, 2, %s' % (vr(vT[2]), vr(vLane)))
            e('s_add_u32 %s, %s, %d' % (sr(sT1), sr(sKVb), w * 1024))
            for r in range(4):
                e('buffer_atomic_add_f32 %s, %s, %s, %s offen offset:%d' % (vr(vT[4 + r]), vr(vT[2]), sr(S_WS, 4), sr(sT1), r * 256))
            if w == 0:
                e('v_add_u32 %s, %d, %s' % (vr(vT[3]), base, vr(vT[2])))
                for ww in range(4): e.raw('ds_read_b32 %s, %s offset:%d' % (vr(vT[16 + ww]), vr(vT[3]), ww * 256))
                e('s_waitcnt lgkmcnt(0)')
                e('v_add_f32 %s, %s, %s' % (vr(vT[16]), vr(vT[16]), vr(vT[17])))
                e('v_add_f32 %s, %s, %s' % (vr(vT[18]), vr(vT[18]), vr(vT[19])))
                e('v_add_f32 %s, %s, %s' % (vr(vT[16]), vr(vT[16]), vr(vT[18])))
                e('s_add_u32 %s, %s, 4096' % (sr(sT1), sr(sKVb)))
                e.raw('buffer_atomic_add_f32 %s, %s, %s, %s offen' % (vr(vT[16]), vr(vT[2]), sr(S_WS, 4), sr(sT1)))
        self.four_way(var1, 'kvr')
        self.last_store = e.vm_idx()

    def kvacc_loads(self):
        e = self.e
        e('v_lshlrev_b32 %s, 2, %s' % (vr(vT[24]), vr(vLane)))
        for c in range(2):
            for qd in range(2):
                e('s_add_u32 %s, %s, %d' % (sr(sT1), sr(sKVb), (c * 2 + qd) * 1024))
                for r in range(4):
                    e('buffer_load_dword %s, %s, %s, %s offen offset:%d sc1' % (vr(96 + c * 8 + qd * 4 + r), vr(vT[24]), sr(S_WS, 4), sr(sT1), r * 256))
        e('v_bfe_u32 %s, %s, 4, 1' % (vr(vT[25]), vr(vLane)))
        e('v_xor_b32 %s, 1, %s' % (vr(vT[25]), vr(vT[25])))
        e('v_lshlrev_b32 %s, 6, %s' % (vr(vT[25]), vr(vT[25])))
        e('v_lshrrev_b32 %s, 5, %s' % (vr(vT[26]), vr(vLane)))
        e('v_lshl_add_u32 %s, %s, 5, %s' % (vr(vT[25]), vr(vT[26]), vr(vT[25])))
        e('s_add_u32 %s, %s, 4096' % (sr(sT1), sr(sKVb)))
        for c in range(2):
            for qd in range(2):
                e('buffer_load_dwordx4 %s, %s, %s, %s offen offset:%d sc1' % (vr(112 + c * 8 + qd * 4, 4), vr(vT[25]), sr(S_WS, 4), sr(sT1), c * 128 + qd * 16))
        self.kvacc_last = e.vm_idx()

    def q_epilogue(self):
        e = self.e
        for c in range(2):
            self.phi_block([ACC + 16 * c + r for r in range(16)])
            for q in range(8): e('v_cvt_pk_bf16_f32 %s, %s, %s' % (vr(vT[8 * c + q]), vr(ACC + 16 * c + 2 * q), vr(ACC + 16 * c + 2 * q + 1)))
        e.wait_vm(self.kvacc_last)
        for c in range(2):
            P = 96 + 8 * c; Z = 112 + 8 * c
            for q in range(4): e('v_cvt_pk_bf16_f32 %s, %s, %s' % (vr(P + q), vr(P + 2 * q), vr(P + 2 * q + 1)))
            for q in range(4): e('v_cvt_pk_bf16_f32 %s, %s, %s' % (vr(Z + q), vr(Z + 2 * q), vr(Z + 2 * q + 1)))
            for q in range(4):
                e('v_cndmask_b32 %s, %s, %s, %s' % (vr(P + 4 + q), vr(Z + q), vr(P + q), sr(MASK16, 2)))
                e('v_cndmask_b32 %s, %s, %s, %s' % (vr(Z + 4 + q), vr(P + q), vr(Z + q), sr(MASK16, 2)))
        for c in range(2):
            P = 96 + 8 * c; Z = 112 + 8 * c
            e('v_mfma_f32_32x32x16_bf16 %s, %s, %s, 0' % (vr(64, 16), vr(P + 4, 4), vr(vT[8 * c], 4)))
            e('v_mfma_f32_32x32x16_bf16 %s, %s, %s, 0' % (vr(80, 16), vr(Z + 4, 4), vr(vT[8 * c + 4], 4)))
            for b in range(2):
                D = 64 + 16 * b
                num = D + 8 * b; den = D + 8 * (1 - b)
                e('v_add_f32 v26, 0x358637bd, %s' % vr(den))
                e('v_rcp_f32 v26, v26')
                T = vT[16 + 8 * b:16 + 8 * b + 8]
                for q in range(4): e('v_pk_mul_f32 %s, %s, v[26:27] op_sel_hi:[1,0]' % (vr(num + 2 * q, 2), vr(num + 2 * q, 2)))
                for q in range(4): e('v_cvt_pk_bf16_f32 %s, %s, %s' % (vr(T[q]), vr(num + 2 * q), vr(num + 2 * q + 1)))
                e('s_add_u32 %s, %s, %d' % (sr(sT1), sr(sKC), (2 * c + b) * 1024))
                e('buffer_store_dwordx4 %s, %s, %s, %s offen sc1' % (vr(T[0], 4), vr(vL16), sr(S_WS, 4), sr(sT1)))
        self.last_store = e.vm_idx()

    def setup_type(self):
        e = self.e
        st = sSpin
        e('s_mul_i32 %s, %s, 448' % (sr(sT2), sr(st)))
        if self.typ == 'Q':
            self.units = ['gu', 'gu', 'q']
            e('s_cmp_eq_u32 %s, 3' % sr(sQ4)); e('s_cselect_b32 %s, 320, 0' % sr(sT1))
            e('s_add_u32 %s, %s, %s' % (sr(sT2), sr(sT2), sr(sT1)))
            e('s_mul_i32 %s, %s, %d' % (sr(sA), sr(sWave), 16 * 3584))
            e('s_lshl_b32 %s, %s, 1' % (sr(sT1), sr(sT2)))
            e('s_add_u32 %s, %s, %s' % (sr(sA), sr(sA), sr(sT1)))
            e('s_add_u32 %s, %s, 128' % (sr(sB), sr(sA)))
            e('s_mul_i32 %s, %s, %d' % (sr(sC), sr(sWave), 32 * 3072))
            e('s_lshl_b32 %s, %s, 7' % (sr(sT1), sr(sHG)))
            e('s_add_u32 %s, %s, %s' % (sr(sC), sr(sC), sr(sT1)))
            e('s_lshl_b32 %s, %s, 6' % (sr(sT1), sr(sT2)))
            e('s_add_u32 %s, %s, %s' % (sr(sKA), sr(sHst), sr(sT1)))
            e('s_add_u32 %s, %s, 4096' % (sr(sKB), sr(sKA)))
            e('s_lshl_b32 %s, %s, 12' % (sr(sT1), sr(sHG)))
            e('s_add_u32 %s, %s, %s' % (sr(sKC), sr(sHst), sr(sT1)))
            e('s_add_u32 %s, %s, %d' % (sr(sKC), sr(sKC), 112 * 1024))
            self.w = [gu_item('A', sA, p) for p in range(8)] + [gu_item('B', sB, p) for p in range(8)] + [q_item(sC, p) for p in range(4)]
        else:
            self.units = ['kv', 'gu', 'half']
            e('s_cmp_eq_u32 %s, 1' % sr(sQ4)); e('s_cselect_b32 %s, 128, 256' % sr(sT1)) if False else None
            e('s_cmp_eq_u32 %s, 1' % sr(sQ4))
            e('s_movk_i32 %s, 256' % sr(sT1)); e('s_cselect_b32 %s, 128, %s' % (sr(sT1), sr(sT1)))
            e('s_movk_i32 %s, 224' % sr(sT3)); e('s_cselect_b32 %s, 192, %s' % (sr(sT3), sr(sT3)))
            e('s_add_u32 %s, %s, %s' % (sr(sT1), sr(sT1), sr(sT2)))
            e('s_add_u32 %s, %s, %s' % (sr(sT3), sr(sT3), sr(sT2)))
            e('s_mul_i32 %s, %s, %d' % (sr(sA), sr(sWave), 16 * 3072))
            e('s_lshl_b32 %s, %s, 7' % (sr(sT2), sr(sHG)))
            e('s_add_u32 %s, %s, %s' % (sr(sA), sr(sA), sr(sT2)))
            e('s_add_u32 %s, %s, 1024' % (sr(sA), sr(sA)))
            e('s_mul_i32 %s, %s, %d' % (sr(sB), sr(sWave), 16 * 3584))
            e('s_lshl_b32 %s, %s, 1' % (sr(sT2), sr(sT1)))
            e('s_add_u32 %s, %s, %s' % (sr(sB), sr(sB), sr(sT2)))
            e('s_mul_i32 %s, %s, %d' % (sr(sC), sr(sWave), 32 * 3584))
            e('s_lshl_b32 %s, %s, 1' % (sr(sT2), sr(sT3)))
            e('s_add_u32 %s, %s, %s' % (sr(sC), sr(sC), sr(sT2)))
            e('s_lshl_b32 %s, %s, 6' % (sr(sT2), sr(sT1)))
            e('s_add_u32 %s, %s, %s' % (sr(sKB), sr(sHst), sr(sT2)))
            e('s_lshl_b32 %s, %s, 6' % (sr(sT2), sr(sT3)))
            e('s_add_u32 %s, %s, %s' % (sr(sKC), sr(sHst), sr(sT2)))
            self.w = [kv_item(sA, p) for p in range(8)] + [gu_item('B', sB, p) for p in range(8)] + [half_item(sC, p) for p in range(4)]
        for p, it in enumerate(self.w): it.slot = p % 6
        self.v = [w2_item(k) for k in range(18)]
        for k, it in enumerate(self.v): it.slot = 6 + (k % 4)

    def clears(self):
        e = self.e
        lab = self.w0_begin()
        e('s_mov_b64 exec, 1')
        e('v_mov_b32 %s, 0' % vr(vT[30]))
        e.raw('buffer_store_dword %s, %s, %s, %s offen sc1' % (vr(vT[30]), vr(vT[30]), sr(S_WS, 4), sr(sFlagOwn)))
        if self.typ == 'KV':
            e('s_lshl_b32 %s, %s, 7' % (sr(sT1), sr(sHG))); e('s_lshl_b32 %s, %s, 2' % (sr(sT2), sr(sRB)))
            e('s_add_u32 %s, %s, %s' % (sr(sT1), sr(sT1), sr(sT2))); e('s_add_u32 %s, %s, %d' % (sr(sPoll + 1), sr(sT1), KVF_OFF))
            e.raw('buffer_store_dword %s, %s, %s, %s offen sc1' % (vr(vT[30]), vr(vT[30]), sr(S_WS, 4), sr(sPoll + 1)))
        e('s_mov_b64 exec, -1')
        self.w0_end(lab)
        if self.typ == 'KV':
            e('s_lshl_b32 %s, %s, 7' % (sr(sT1), sr(sHG))); e('s_lshl_b32 %s, %s, 2' % (sr(sT2), sr(sRB)))
            e('s_add_u32 %s, %s, %s' % (sr(sT1), sr(sT1), sr(sT2))); e('s_add_u32 %s, %s, %d' % (sr(sPoll + 1), sr(sT1), KVF_OFF))
            lab = self.L('noclr')
            e('s_cmp_lg_u32 %s, 0' % sr(sRB)); e('s_cbranch_scc1 %s' % lab)
            for q in range(4): e('v_mov_b32 %s, 0' % vr(vT[24 + q]))
            e('s_add_u32 %s, %s, %s' % (sr(sT1), sr(sKVb), sr(sLdsW)))
            e('s_lshl_b32 %s, %s, 10' % (sr(sT2), sr(sWave)))
            e('s_add_u32 %s, %s, %s' % (sr(sT1), sr(sKVb), sr(sT2)))
            e.raw('buffer_store_dwordx4 %s, %s, %s, %s offen sc1' % (vr(vT[24], 4), vr(vL16), sr(S_WS, 4), sr(sT1)))
            e('s_add_u32 %s, %s, 4096' % (sr(sT1), sr(sKVb)))
            e('s_mov_b64 exec, 0xffff')
            e.raw('buffer_store_dwordx4 %s, %s, %s, %s offen sc1' % (vr(vT[24], 4), vr(vL16), sr(S_WS, 4), sr(sT1)))
            e('s_mov_b64 exec, -1')
            e.label(lab)

    def x_phase(self):
        e = self.e
        nxt = [self.w[2], self.w[3], self.w[4], self.w[5], self.v[0], self.v[1], self.v[2], self.v[3]]
        SQ = [vT[8], vT[9], vT[10], vT[11]]
        for q in range(4):
            e('v_mov_b32 %s, 0' % vr(vSUM[q])); e('v_mov_b32 %s, 0' % vr(SQ[q]))
        def sums(c):
            e.wait_lg('xr%d' % c)
            for r in range(16):
                x = XF + 16 * c + r
                e('v_dot2c_f32_bf16 %s, %s, %s' % (vr(vSUM[r & 3]), sr(sOnes), vr(x)))
                e('v_dot2c_f32_bf16 %s, %s, %s' % (vr(SQ[r & 3]), vr(x), vr(x)))
        for c in range(8):
            it = self.xit[c]
            e.wait_vm(it.last_vm)
            e('v_add_u32 %s, %d, %s' % (vr(vR[0]), it.slot * SLOT, vr(vPX)))
            for k in range(1, 4): e('v_xor_b32 %s, %d, %s' % (vr(vR[k]), 32 * k, vr(vR[0])))
            for k in range(4):
                e('ds_read_b128 %s, %s' % (vr(XF + 16 * c + 4 * k, 4), vr(vR[k])), tag='xr%d' % c)
            if c > 0:
                e.wait_lg('xr%d' % (c - 1))
                for i in range(4): emit_dma(e, nxt[c - 1], i)
                sums(c - 1)
        e.wait_lg('xr7')
        for i in range(4): emit_dma(e, nxt[7], i)
        sums(7)
        for A4 in (vSUM, SQ):
            e('v_add_f32 %s, %s, %s' % (vr(A4[0]), vr(A4[0]), vr(A4[1])))
            e('v_add_f32 %s, %s, %s' % (vr(A4[2]), vr(A4[2]), vr(A4[3])))
            e('v_add_f32 %s, %s, %s' % (vr(A4[0]), vr(A4[0]), vr(A4[2])))
            e('v_mov_b32 %s, %s' % (vr(A4[1]), vr(A4[0])))
        for A4 in (vSUM, SQ):
            e('v_permlane32_swap_b32 %s, %s' % (vr(A4[0]), vr(A4[1])))
        for A4 in (vSUM, SQ):
            e('v_add_f32 %s, %s, %s' % (vr(A4[0]), vr(A4[0]), vr(A4[1])))
        e('v_mul_f32 %s, 0xbb000000, %s' % (vr(vNM), vr(vSUM[0])))
        e('v_mul_f32 %s, 0x3b000000, %s' % (vr(SQ[0]), vr(SQ[0])))
        e('v_fma_f32 %s, -%s, %s, %s' % (vr(SQ[0]), vr(vNM), vr(vNM), vr(SQ[0])))
        e('v_max_f32 %s, 0, %s' % (vr(SQ[0]), vr(SQ[0])))
        e('v_add_f32 %s, 0x3727c5ac, %s' % (vr(SQ[0]), vr(SQ[0])))
        e('v_rsq_f32 %s, %s' % (vr(vRS), vr(SQ[0])))

    def barrier_stage(self, p):
        e = self.e
        e.wait_vm(self.w[p].last_vm)
        if p in self.pre_barrier_waits:
            for idx in self.pre_barrier_waits[p](): e.wait_vm(idx)
        e('s_barrier')
        self.set_raddr(self.units[min(p // 8, 2)], self.w[p].slot)
        for f in self.post_barrier.get(p, []): f()

    def v_reads(self, k, part):
        e = self.e
        it = self.v[k]
        if part == 0:
            e.wait_vm(it.last_vm)
            e('v_add_u32 %s, %d, %s' % (vr(vRW[0]), it.slot * SLOT, vr(vPW2)))
            e('v_xor_b32 %s, 64, %s' % (vr(vRW[1]), vr(vRW[0])))
        step = 2 * k + (part >> 1); c = part & 1
        b = AW2 + step * 8 + c * 4
        off = (part >> 1) * 2048
        e('ds_read_b64_tr_b16 %s, %s offset:%d' % (ar(b, 2), vr(vRW[c]), off))
        e('ds_read_b64_tr_b16 %s, %s offset:%d' % (ar(b + 2, 2), vr(vRW[c]), off + 1024), tag='v%d_%d' % (k, part))

    def phase1(self):
        e = self.e; cfg = self.cfg
        self.setup_type()
        self.clears()
        for p in (0, 1):
            for i in range(4): emit_dma(e, self.w[p], i)
        e('s_mov_b32 %s, 0x0000ffff' % sr(MASK16)); e('s_mov_b32 %s, 0x0000ffff' % sr(MASK16 + 1))
        self.x_phase()
        self.pre_barrier_waits = {}
        self.post_barrier = {}
        gap = {i: [] for i in range(-LA, 321)}
        def at(i, f): gap[i].append(f)
        for p in range(2, 16):
            pos0 = 16 * p - LA
            if self.typ == 'KV' and p == 8: continue
            for i in range(4): at(pos0 + 1 + 2 * i, (lambda it=self.w[p + 4], i=i: emit_dma(e, it, i)))
        for k in range(14):
            pos0 = 16 * (k + 3) - LA
            for part in range(4): at(pos0 + 2 + 2 * part, (lambda k=k, part=part: self.v_reads(k, part)))
            if k + 4 < 18:
                def issue(k=k, i=0):
                    e.wait_lg('v%d_3' % k); emit_dma(e, self.v[k + 4], i)
                for i in range(4): at(pos0 + 10 + i, (lambda k=k, i=i: issue(k, i)))
        def cnt_add():
            lab = self.w0_begin()
            e('s_mov_b64 exec, 1')
            e('v_mov_b32 %s, 0' % vr(vT[30])); e('v_mov_b32 %s, 1' % vr(vT[31]))
            e.raw('buffer_atomic_add %s, %s, %s, 0 offen' % (vr(vT[31]), vr(vT[30]), sr(S_DBG, 4)))
            e('s_mov_b64 exec, -1')
            self.w0_end(lab)
        self.post_barrier[0] = [cnt_add]
        at(16 * 3 + 9, lambda: self.poll_issue('cnt'))
        at(16 * 6 + 9, lambda: self.poll_check('cnt'))
        stores = {}
        self.barrier_stage(0)
        for i in range(LA): self.reads(i)
        for s in self.norm_instrs(0): e(s)
        for i in range(320):
            self.mfma(i)
            if i + LA < 320:
                if (i + LA) % 16 == 0: self.barrier_stage((i + LA) // 16)
                self.reads(i + LA)
            if i < 128:
                k = i >> 2
                if k + 1 < 32:
                    ni = self.norm_instrs(k + 1)
                    for s in ni[(i & 3) * 4:(i & 3) * 4 + 4]: e(s)
            for f in gap[i]: f()
            if i == 127:
                if self.typ == 'Q':
                    self.ffn_epilogue(4, sKA)
                else:
                    self.kv_epilogue(self.w[12].slot)
                    kv_last = self.last_store
                    for ii in range(4): emit_dma(e, self.w[12], ii)
                    self.pre_barrier_waits[11] = lambda: [kv_last]
                    self.post_barrier[11] = [lambda: self.store_flag(sPoll + 1, 1)]
            if i == 255:
                self.ffn_epilogue(4, sKB)
                early_last = self.last_store
                self.pre_barrier_waits[19] = lambda: [early_last]
                self.post_barrier[19] = [lambda: self.store_flag(sFlagOwn, 1)]
            if self.typ == 'Q':
                if i == 16 * 14: self.poll_issue('kv')
                if i == 16 * 16 + 4: self.poll_check('kv')
                if i == 16 * 17 - LA + 1: self.kvacc_loads()

            if i == 300: self.poll_issue('early')
        self.gemm2()

    def h_load(self, st):
        e = self.e
        for b in range(2):
            r = XF + (st % 16) * 8 + 4 * b
            if st < 24: base, off = sHld, EARLY_REL[st] * 1024
            elif st < 28: base, off = sHld, LATE_REL[st - 24] * 1024
            else: base, off = sHlo, (st - 28) * 1024
            e('s_add_u32 %s, %s, %d' % (sr(sT1), sr(base), off + b * H_RT))
            e('buffer_load_dwordx4 %s, %s, %s, %s offen sc1' % (vr(r, 4), vr(vL16), sr(S_WS, 4), sr(sT1)), tag='h%d_%d' % (st, b))

    def w2_lds_reads(self, st):
        e = self.e
        it = self.v[st // 2]
        if st % 2 == 0:
            e('v_add_u32 %s, %d, %s' % (vr(vRW[0]), it.slot * SLOT, vr(vPW2)))
            e('v_xor_b32 %s, 64, %s' % (vr(vRW[1]), vr(vRW[0])))
        for c in range(2):
            b = AW1 + (st % 4) * 8 + c * 4
            off = (st & 1) * 2048
            e('ds_read_b64_tr_b16 %s, %s offset:%d' % (ar(b, 2), vr(vRW[c]), off))
            e('ds_read_b64_tr_b16 %s, %s offset:%d' % (ar(b + 2, 2), vr(vRW[c]), off + 1024), tag='w2r%d_%d' % (st, c))

    def gemm2(self):
        e = self.e; cfg = self.cfg
        self.poll_check('early')
        e('s_barrier')
        for st in range(16): self.h_load(st)
        XR = vT[16]
        if self.typ == 'Q': self.q_epilogue()
        else: self.ffn_epilogue(2, sKC)
        late_last = self.last_store
        e('v_and_b32 %s, 31, %s' % (vr(vT[0]), vr(vLane)))
        e('v_lshlrev_b32 %s, 10, %s' % (vr(vT[0]), vr(vT[0])))
        e('v_lshrrev_b32 %s, 5, %s' % (vr(vT[1]), vr(vLane)))
        e('v_lshl_add_u32 %s, %s, 4, %s' % (vr(vT[0]), vr(vT[1]), vr(vT[0])))
        e('s_lshl_b32 %s, %s, 16' % (sr(sT2), sr(sRT)))
        e('s_and_b32 %s, %s, 1' % (sr(sT3), sr(sWave))); e('s_lshl_b32 %s, %s, 15' % (sr(sT3), sr(sT3)))
        e('s_add_u32 %s, %s, %s' % (sr(sT2), sr(sT2), sr(sT3)))
        e('s_lshl_b32 %s, %s, 7' % (sr(sT3), sr(sCT))); e('s_add_u32 %s, %s, %s' % (sr(sT2), sr(sT2), sr(sT3)))
        e('s_lshr_b32 %s, %s, 1' % (sr(sT3), sr(sWave))); e('s_lshl_b32 %s, %s, 6' % (sr(sT3), sr(sT3)))
        e('s_add_u32 %s, %s, %s' % (sr(sA), sr(sT2), sr(sT3)))
        e('buffer_load_dwordx4 %s, %s, %s, %s offen' % (vr(vT[16], 4), vr(vT[0]), sr(S_X, 4), sr(sA)))
        e('buffer_load_dwordx4 %s, %s, %s, %s offen offset:32' % (vr(vT[20], 4), vr(vT[0]), sr(S_X, 4), sr(sA)), tag='resid')
        e.wait_vm(self.v[17].last_vm)
        for st in range(36):
            if st + 2 >= 28 and st + 2 < 36 and st >= 26: self.w2_lds_reads(st + 2)
            e.wait_vm('h%d_1' % st)
            for a in range(2):
                if st < 28: wf = ar(AW2 + st * 8 + 4 * a, 4)
                else:
                    e.wait_lg('w2r%d_%d' % (st, a)); wf = ar(AW1 + (st % 4) * 8 + 4 * a, 4)
                for b in range(2):
                    acc = vr(ACC + 16 * (2 * a + b), 16)
                    e('v_mfma_f32_32x32x16_bf16 %s, %s, %s, %s' % (acc, wf, vr(XF + (st % 16) * 8 + 4 * b, 4), '0' if st == 0 else acc))
            if st < 8: self.h_load(st + 16)
            if st == 4:
                e.wait_vm(late_last); e('s_barrier'); self.store_flag(sFlagOwn, 2)
            if st == 6: self.poll_issue('late')
            if st == 10:
                self.poll_check('late'); e('s_barrier')
                for s2 in range(24, 24 + 3): self.h_load(s2)
            if st > 10 and st + 16 < 36: self.h_load(st + 16)
        def fin(e, w):
            for q in range(4):
                if q == w: continue
                pos = (w - q) & 3
                e('v_add_u32 %s, %d, %s' % (vr(vT[1]), q * SLOT + pos * 4096, vr(vL16)))
                for i in range(4): e('ds_write_b128 %s, %s offset:%d' % (vr(vT[1]), vr(ACC + 16 * q + 4 * i, 4), i * 1024))
            e('s_waitcnt lgkmcnt(0)'); e.lg_done = e.lg_n - 1
            e('s_barrier')
            e('v_add_u32 %s, %d, %s' % (vr(vT[1]), w * SLOT, vr(vL16)))
            R = XF
            for pos in range(1, 4):
                for i in range(4): e('ds_read_b128 %s, %s offset:%d' % (vr(R + (pos - 1) * 16 + 4 * i, 4), vr(vT[1]), pos * 4096 + i * 1024))
            e.wait_vm('resid')
            X = vT[16]
            for jj in range(2):
                e('v_permlane32_swap_b32 %s, %s' % (vr(X + 4 * jj), vr(X + 4 * jj + 2)))
                e('v_permlane32_swap_b32 %s, %s' % (vr(X + 4 * jj + 1), vr(X + 4 * jj + 3)))
            own = ACC + 16 * w
            for r in range(16):
                e('v_dot2_f32_bf16 %s, %s, %s, %s' % (vr(own + r), vr(X + r // 2), sr(sLo if r % 2 == 0 else sHi), vr(own + r)))
            e('s_waitcnt lgkmcnt(0)'); e.lg_done = e.lg_n - 1
            for r in range(16): e('v_add_f32 %s, %s, %s' % (vr(R + r), vr(R + r), vr(R + 16 + r)))
            for r in range(16): e('v_add_f32 %s, %s, %s' % (vr(own + r), vr(own + r), vr(R + 32 + r)))
            for r in range(16): e('v_add_f32 %s, %s, %s' % (vr(own + r), vr(own + r), vr(R + r)))
            O = vT[24]
            for q in range(8): e('v_cvt_pk_bf16_f32 %s, %s, %s' % (vr(O + q), vr(own + 2 * q), vr(own + 2 * q + 1)))
            for jj in range(2):
                e('v_permlane32_swap_b32 %s, %s' % (vr(O + 4 * jj), vr(O + 4 * jj + 2)))
                e('v_permlane32_swap_b32 %s, %s' % (vr(O + 4 * jj + 1), vr(O + 4 * jj + 3)))
            e('buffer_store_dwordx4 %s, %s, %s, %s offen' % (vr(O, 4), vr(vT[0]), sr(S_OUT, 4), sr(sA)))
            e('buffer_store_dwordx4 %s, %s, %s, %s offen offset:32' % (vr(O + 4, 4), vr(vT[0]), sr(S_OUT, 4), sr(sA)))
        self.four_way(fin, 'fin')
        e('s_endpgm')

HEADER = """; Kernarg layout for this problem (80 bytes, ptrs only, base s[0:1]):
;   offset   0: d_in[0] A_x ... offset 56: d_out, 64: d_debug, 72: d_ws
; Fused LayerNorm + linear attention + bilinear GLU.  Generated by a hand-written script (gen.py).
; @launch grid=(256,1,1) block=(256,1,1) lds=163840
.amdgcn_target "amdgcn-amd-amdhsa--gfx950"
.text
.globl %s
.p2align 8
.type %s,@function
%s:
""" % (NAME, NAME, NAME)

FOOTER = """
.section .rodata,"a"
.p2align 6
.amdhsa_kernel %s
  .amdhsa_next_free_vgpr 512
  .amdhsa_next_free_sgpr 102
  .amdhsa_accum_offset 256
  .amdhsa_group_segment_fixed_size 0
  .amdhsa_kernarg_size 80
  .amdhsa_user_sgpr_count 2
  .amdhsa_user_sgpr_kernarg_segment_ptr 1
  .amdhsa_system_sgpr_workgroup_id_x 1
.end_amdhsa_kernel
""" % NAME

def build(cfg=None):
    cfg = cfg or {}
    e = Em()
    xit = prologue(e, cfg)
    e('s_cmp_eq_u32 %s, 1' % sr(sQ4)); e('s_cbranch_scc1 L_KV')
    e('s_cmp_eq_u32 %s, 2' % sr(sQ4)); e('s_cbranch_scc1 L_KV')
    import copy
    eq = e.fork(); ek = e.fork()
    xq = copy.deepcopy(xit); xk = copy.deepcopy(xit)
    Path(eq, 'Q', cfg, xq).phase1()
    Path(ek, 'KV', cfg, xk).phase1()
    body = e.L + eq.L + [Ins('L_KV:')] + ek.L + [Ins('L_end:'), Ins('s_endpgm'), Ins('L_codeend:')]
    body = pad_hazards(body)
    txt = '\n'.join(('' if i.kind == 'label' else '  ') + i.text for i in body)
    return HEADER + txt + '\n  .fill 320, 4, 0xbf800000\n' + FOOTER

if __name__ == '__main__':
    out = sys.argv[1] if len(sys.argv) > 1 else 'parallel_sum__linear_attn_block__glu_gated_bilinear__prompt.s'
    open(out, 'w').write(build())
    print('written', out)
```

```python
import sys, os
sys.path.insert(0, os.path.dirname(os.path.abspath(__file__)))
from emit import Em, Ins, pad_hazards

NAME = 'parallel_sum__linear_attn_block__glu_gated_bilinear__prompt_kernel'

H_OFF = 0
H_RT = 144 * 1024
KV_OFF = 10 << 20
FLG_OFF = KV_OFF + 65536
KVF_OFF = FLG_OFF + 64 * 128
WS_BYTES = 11 << 20

SLOT = 16384
NSLOT = 10

S_X, S_QKV, S_WO, S_WG, S_WU, S_WD, S_OUT, S_WS, S_DBG = 8, 12, 16, 20, 24, 28, 32, 36, 40
sWave = 44
sLdsW = 45
sXb = 46
sA = 47
sB = 48
sC = 49
sW2 = 50
sWO = 51
sHst = 52
sKA = 53
sKB = 54
sKC = 55
sHld = 56
sHlo = 57
sRB = 58
sHG = 59
sQ4 = 60
sRT = 61
sCT = 62
sLo = 63
sHi = 64
sOnes = 65
sT0, sT1, sT2, sT3 = 66, 67, 68, 69
sKVb = 70
sFlagOwn = 71
sSpin = 72
sEx = 74
sArg = 76
sCmp = 96

vL16 = 1
vDX0, vDX1 = 2, 3
vDGU0, vDGU1 = 4, 5
vDKV = 6
vDH0, vDH1 = 7, 8
vDW2 = 9
vPGU, vPKV, vPH, vPW2, vPX = 10, 11, 12, 13, 14
vR = [15, 16, 17, 18]
vRW = [19, 20]
vNM = 21
vRS = 22
vRS2 = 24
vSUM = [26, 27, 28, 29]
vLane = 30
vT = list(range(32, 64))
ACC = 64
XF = 128
AW1 = 0
AW2 = 32
LA = 6

def vr(b, n=1): return 'v%d' % b if n == 1 else 'v[%d:%d]' % (b, b + n - 1)
def ar(b, n=1): return 'a%d' % b if n == 1 else 'a[%d:%d]' % (b, b + n - 1)
def sr(b, n=1): return 's%d' % b if n == 1 else 's[%d:%d]' % (b, b + n - 1)

EARLY_REL = [0, 1, 2, 3, 4, 5, 6, 7, 8, 9, 10, 11, 16, 17, 18, 19, 20, 21, 22, 23, 24, 25, 26, 27]
LATE_REL = [12, 13, 14, 15]

STAMP_OFF = KVF_OFF + 8 * 128 + 1024
STAMP_REGS = [100, 101, 76, 77, 78, 79, 80, 81, 82, 83, 89, 90, 91, 92, 93, 94, 95, 96, 97]
class Stamps:
    def __init__(self, on): self.on = on; self.names = []; self.sel = None; self.pending = None
    def flush(self, e):
        if self.pending is not None:
            e.raw('s_mov_b32 %s, s98' % sr(STAMP_REGS[self.names.index(self.pending)]))
            self.pending = None
    def __call__(self, e, name, real=False):
        if not self.on: return
        if self.sel is not None and name not in self.sel and name not in ('rt0', 't0', 'rt1'): return
        if name not in self.names: self.names.append(name)
        if name == 'rt0':
            e.raw('s_memrealtime s[98:99]'); e.raw('s_memtime s[96:97]'); return
        if name == 't0':
            return
        if self.entry_pending(e): pass
        self.flush(e)
        e.raw(('s_memrealtime s[98:99]' if real else 's_memtime s[98:99]'))
        self.pending = name
    def entry_pending(self, e): return False
    def entry_save(self, e):
        if not self.on: return
        e.raw('s_mov_b32 s100, s98'); e.raw('s_mov_b32 s101, s96')
    def dump(self, e):
        if not self.on: return
        e('s_waitcnt lgkmcnt(0)')
        self.flush(e)
        e('s_lshl_b32 %s, s2, 2' % sr(sT1)); e('s_add_u32 %s, %s, %s' % (sr(sT1), sr(sT1), sr(sWave)))
        e('s_lshl_b32 %s, %s, 7' % (sr(sT1), sr(sT1))); e('s_add_u32 %s, %s, %d' % (sr(sT1), sr(sT1), STAMP_OFF))
        e('s_mov_b64 exec, 1')
        e('v_mov_b32 v2, 0')
        for i, nm in enumerate(self.names):
            e('v_mov_b32 v3, %s' % sr(STAMP_REGS[i]))
            e.raw('buffer_store_dword v3, v2, %s, %s offen offset:%d' % (sr(S_WS, 4), sr(sT1), 4 * i))
        if self.dbgout:
            e('s_not_b32 %s, s100' % sr(sT2)); e('v_mov_b32 v3, %s' % sr(sT2))
            e.raw('buffer_atomic_umax v3, v2, %s, 0 offen offset:4' % sr(S_DBG, 4))
            e('v_mov_b32 v3, %s' % sr(STAMP_REGS[self.names.index('rt1')]))
            e.raw('buffer_atomic_umax v3, v2, %s, 0 offen offset:8' % sr(S_DBG, 4))
            lab = 'L_dbg%d' % self.nd; self.nd += 1
            e('s_lshl_b32 %s, s2, 2' % sr(sT2)); e('s_add_u32 %s, %s, %s' % (sr(sT2), sr(sT2), sr(sWave)))
            e('s_cmp_lg_u32 %s, %d' % (sr(sT2), self.dbgwg * 4)); e('s_cbranch_scc1 %s' % lab)
            j = 3
            for i, nm in enumerate(self.names):
                if nm in ('rt0', 't0', 'rt1') or j > 15: continue
                e('s_sub_u32 %s, %s, s101' % (sr(sT2), sr(STAMP_REGS[i]))); e('v_mov_b32 v3, %s' % sr(sT2))
                e.raw('buffer_store_dword v3, v2, %s, 0 offen offset:%d' % (sr(S_DBG, 4), 4 * j)); j += 1
            e.label(lab)
        e('s_mov_b64 exec, -1')
ST = Stamps(False)

class Dma:
    def __init__(self, srd, voff, sbase, soff, ldsq):
        self.srd, self.voff, self.sbase, self.soff, self.ldsq = srd, voff, sbase, soff, ldsq

class Item:
    def __init__(self, name, kind, dmas):
        self.name, self.kind, self.dmas = name, kind, dmas
        self.slot = None; self.issued = 0; self.last_vm = None

def x_item(c):
    return Item('x%d' % c, 'x', [Dma(S_X, vDX0 if i % 2 == 0 else vDX1, sXb, i * 8192 + c * 128, i * 1024) for i in range(4)])
def gu_item(nm, sbase, p):
    return Item('%s%d' % (nm, p), 'w', [Dma(S_WG if i < 2 else S_WU, vDGU0 if i < 2 else vDGU1, sbase, (64 * p + 8 * (i & 1)) * 3584, i * 1024) for i in range(4)])
def kv_item(sbase, p):
    return Item('kv%d' % p, 'w', [Dma(S_QKV, vDKV, sbase, (64 * p + 8 * (i & 1)) * 3072 + (1024 if i >= 2 else 0), i * 1024) for i in range(4)])
def q_item(sbase, p):
    return Item('q%d' % p, 'w', [Dma(S_QKV, vDKV, sbase, (128 * p + 16 * (i >> 1) + 8 * (i & 1)) * 3072, i * 1024) for i in range(4)])
def half_item(sbase, p):
    return Item('hf%d' % p, 'w', [Dma(S_WG if (i & 1) == 0 else S_WU, vDH0 if (i & 1) == 0 else vDH1, sbase, (128 * p + 16 * (i >> 1)) * 3584, i * 1024) for i in range(4)])
def w2_item(v):
    d = []
    for i in range(4):
        step = 2 * v + (i >> 1)
        if step < 24: d.append(Dma(S_WD, vDW2, sW2, EARLY_REL[step] * 16384 + (i & 1) * 8192, i * 1024))
        elif step < 28: d.append(Dma(S_WD, vDW2, sW2, LATE_REL[step - 24] * 16384 + (i & 1) * 8192, i * 1024))
        else: d.append(Dma(S_WO, vDW2, sWO, (step - 28) * 16384 + (i & 1) * 8192, i * 1024))
    return Item('V%d' % v, 'v', d)

def emit_dma(e, it, i, tag=None):
    d = it.dmas[i]
    e('s_add_u32 m0, %s, %d' % (sr(sLdsW), it.slot * SLOT + d.ldsq))
    if d.soff == 0:
        so = sr(d.sbase)
        e('s_nop 0')
    else:
        e('s_add_u32 %s, %s, %d' % (sr(sT0), sr(d.sbase), d.soff)); so = sr(sT0)
    e('buffer_load_dwordx4 %s, %s, %s offen lds' % (vr(d.voff), sr(d.srd, 4), so))
    it.issued = i + 1
    it.last_vm = e.vm_idx()

def srd(e, dst, ptr, nbytes):
    e('s_mov_b32 %s, %s' % (sr(dst), sr(ptr)))
    e('s_and_b32 %s, %s, 0xffff' % (sr(dst + 1), sr(ptr + 1)))
    e('s_mov_b32 %s, 0x%x' % (sr(dst + 2), nbytes))
    e('s_mov_b32 %s, 0x20000' % sr(dst + 3))

def prologue(e, cfg):
    ST(e, 'rt0', real=True); ST(e, 't0')
    e('s_cmp_ge_u32 s2, 256')
    e('s_cbranch_scc1 L_end')
    e('s_load_dwordx16 %s, s[0:1], 0' % sr(sArg, 16))
    e('s_load_dwordx4 %s, s[0:1], 64' % sr(sArg + 16, 4))
    e('v_and_b32 %s, 63, v0' % vr(vLane))
    e('v_lshrrev_b32 %s, 6, v0' % vr(vT[0]))
    e('v_lshlrev_b32 %s, 4, %s' % (vr(vL16), vr(vLane)))
    e('v_readfirstlane_b32 %s, %s' % (sr(sWave), vr(vT[0])))
    e('v_lshrrev_b32 %s, 3, %s' % (vr(vT[1]), vr(vLane)))
    e('v_and_b32 %s, 7, %s' % (vr(vT[2]), vr(vLane)))
    e('v_lshrrev_b32 %s, 4, %s' % (vr(vT[3]), vr(vLane)))
    e('v_xor_b32 %s, %s, %s' % (vr(vT[4]), vr(vT[2]), vr(vT[3])))
    e('v_lshlrev_b32 %s, 4, %s' % (vr(vT[4]), vr(vT[4])))
    e('v_lshl_add_u32 %s, %s, 10, %s' % (vr(vDX0), vr(vT[1]), vr(vT[4])))
    e('v_xor_b32 %s, 64, %s' % (vr(vDX1), vr(vDX0)))
    e('s_and_b32 %s, s2, 7' % sr(sT0))
    e('s_lshr_b32 %s, s2, 3' % sr(sT1))
    e('s_and_b32 %s, %s, 1' % (sr(sRB), sr(sT0)))
    e('s_lshl_b32 %s, %s, 3' % (sr(sRB), sr(sRB)))
    e('s_and_b32 %s, %s, 7' % (sr(sT2), sr(sT1)))
    e('s_add_u32 %s, %s, %s' % (sr(sRB), sr(sRB), sr(sT2)))
    e('s_lshr_b32 %s, %s, 3' % (sr(sQ4), sr(sT1)))
    e('s_lshr_b32 %s, %s, 1' % (sr(sT3), sr(sT0)))
    e('s_lshl_b32 %s, %s, 2' % (sr(sRT), sr(sT0)))
    e('s_add_u32 %s, %s, %s' % (sr(sRT), sr(sRT), sr(sQ4)))
    e('s_mov_b32 %s, %s' % (sr(sCT), sr(sT2)))
    e('s_lshr_b32 %s, %s, 1' % (sr(sHG), sr(sQ4)))
    e('s_lshl_b32 %s, %s, 1' % (sr(sT2), sr(sT3)))
    e('s_add_u32 %s, %s, %s' % (sr(sHG), sr(sHG), sr(sT2)))
    e('s_lshl_b32 %s, %s, 12' % (sr(sLdsW), sr(sWave)))
    e('s_lshl_b32 %s, %s, 17' % (sr(sXb), sr(sRB)))
    e('s_lshl_b32 %s, %s, 15' % (sr(sT2), sr(sWave)))
    e('s_add_u32 %s, %s, %s' % (sr(sXb), sr(sXb), sr(sT2)))
    e('s_mov_b32 %s, %s' % (sr(sSpin), sr(sT3)))
    e('s_waitcnt lgkmcnt(0)')
    ST.entry_save(e)
    srd(e, S_X, sArg + 0, 2048 * 1024)

    xit = [x_item(c) for c in range(8)]
    e('s_getpc_b64 %s' % sr(sCmp, 2))
    e.label('L_pc')
    e('s_lshr_b32 %s, s2, 3' % sr(sT0))
    e('s_lshl_b32 %s, %s, 2' % (sr(sT0), sr(sT0)))
    e('s_add_u32 %s, %s, %s' % (sr(sT0), sr(sT0), sr(sWave)))
    e('s_lshl_b32 %s, %s, 10' % (sr(sT0), sr(sT0)))
    e('s_cmp_ge_u32 %s, L_codeend-L_pc' % sr(sT0))
    e('s_cbranch_scc1 L_nowarm')
    e.raw('v_add_u32 %s, %s, %s' % (vr(vT[5]), sr(sT0), vr(vL16)))
    e.raw('global_load_dwordx4 %s, %s, %s' % (vr(ACC, 4), vr(vT[5]), sr(sCmp, 2)))
    e.label('L_nowarm')
    for c in range(8):
        xit[c].slot = 2 + c
        for i in range(4): emit_dma(e, xit[c], i)
    srd(e, S_QKV, sArg + 2, 512 * 3072)
    srd(e, S_WO, sArg + 4, 512 * 1024)
    srd(e, S_WG, sArg + 8, 512 * 3584)
    srd(e, S_WU, sArg + 10, 512 * 3584)
    srd(e, S_WD, sArg + 12, 1792 * 1024)
    srd(e, S_OUT, sArg + 14, 2048 * 1024)
    srd(e, S_DBG, sArg + 16, 256)
    srd(e, S_WS, sArg + 18, WS_BYTES)
    e('s_mov_b32 %s, 0x00003f80' % sr(sLo))
    e('s_mov_b32 %s, 0x3f800000' % sr(sHi))
    e('s_mov_b32 %s, 0x3f803f80' % sr(sOnes))
    t = vT
    e('v_and_b32 %s, 1, %s' % (vr(t[4]), vr(t[3])))
    e('v_lshlrev_b32 %s, 1, %s' % (vr(t[5]), vr(t[4])))
    e('v_xor_b32 %s, %s, %s' % (vr(t[5]), vr(t[2]), vr(t[5])))
    e('v_lshlrev_b32 %s, 4, %s' % (vr(t[5]), vr(t[5])))
    e('v_mul_u32_u24 %s, 3584, %s' % (vr(t[6]), vr(t[1])))
    e('v_add_u32 %s, %s, %s' % (vr(vDGU0), vr(t[6]), vr(t[5])))
    e('v_xor_b32 %s, 64, %s' % (vr(t[5]), vr(t[5])))
    e('v_add_u32 %s, %s, %s' % (vr(vDGU1), vr(t[6]), vr(t[5])))
    e('v_lshlrev_b32 %s, 2, %s' % (vr(t[5]), vr(t[4])))
    e('v_xor_b32 %s, %s, %s' % (vr(t[5]), vr(t[2]), vr(t[5])))
    e('v_lshlrev_b32 %s, 4, %s' % (vr(t[5]), vr(t[5])))
    e('v_mul_u32_u24 %s, 3072, %s' % (vr(t[6]), vr(t[1])))
    e('v_add_u32 %s, %s, %s' % (vr(vDKV), vr(t[6]), vr(t[5])))
    e('v_lshl_add_u32 %s, %s, 10, %s' % (vr(vDW2), vr(t[1]), vr(t[5])))
    e('v_lshrrev_b32 %s, 2, %s' % (vr(t[5]), vr(vLane)))
    e('v_mul_u32_u24 %s, 3584, %s' % (vr(t[6]), vr(t[5])))
    e('v_and_b32 %s, 3, %s' % (vr(t[7]), vr(vLane)))
    e('v_lshl_add_u32 %s, %s, 4, %s' % (vr(vDH0), vr(t[7]), vr(t[6])))
    e('v_xor_b32 %s, 32, %s' % (vr(vDH1), vr(vDH0)))
    e('v_bfe_u32 %s, %s, 2, 2' % (vr(t[8]), vr(vLane)))
    e('v_lshrrev_b32 %s, 5, %s' % (vr(t[9]), vr(vLane)))
    e('v_and_b32 %s, 1, %s' % (vr(t[10]), vr(t[1])))
    e('v_lshl_add_u32 %s, %s, 3, %s' % (vr(t[11]), vr(t[9]), vr(t[8])))
    e('v_lshl_add_u32 %s, %s, 2, %s' % (vr(t[12]), vr(t[9]), vr(t[8])))
    e('v_lshlrev_b32 %s, 3, %s' % (vr(t[13]), vr(t[7])))
    e('v_lshl_add_u32 %s, %s, 1, %s' % (vr(t[14]), vr(t[4]), vr(t[10])))
    e('v_lshl_add_u32 %s, %s, 5, %s' % (vr(t[14]), vr(t[14]), vr(t[13])))
    e('v_lshl_add_u32 %s, %s, 7, %s' % (vr(t[14]), vr(t[11]), vr(t[14])))
    e('v_lshl_add_u32 %s, %s, 11, %s' % (vr(vPGU), vr(t[4]), vr(t[14])))
    e('v_lshl_add_u32 %s, %s, 5, %s' % (vr(t[14]), vr(t[4]), vr(t[13])))
    e('v_lshlrev_b32 %s, 6, %s' % (vr(t[15]), vr(t[10])))
    e('v_xor_b32 %s, %s, %s' % (vr(t[14]), vr(t[14]), vr(t[15])))
    e('v_lshl_add_u32 %s, %s, 7, %s' % (vr(vPKV), vr(t[11]), vr(t[14])))
    e('v_lshl_add_u32 %s, %s, 7, %s' % (vr(vPW2), vr(t[12]), vr(t[14])))
    e('v_add_u32 %s, %s, %s' % (vr(vPW2), sr(sLdsW), vr(vPW2)))
    e('v_lshl_add_u32 %s, %s, 5, %s' % (vr(t[14]), vr(t[4]), vr(t[13])))
    e('v_lshl_add_u32 %s, %s, 6, %s' % (vr(t[14]), vr(t[11]), vr(t[14])))
    e('v_lshl_add_u32 %s, %s, 10, %s' % (vr(vPH), vr(t[4]), vr(t[14])))
    e('v_and_b32 %s, 31, %s' % (vr(t[14]), vr(vLane)))
    e('v_bfe_u32 %s, %s, 1, 3' % (vr(t[15]), vr(vLane)))
    e('v_xor_b32 %s, %s, %s' % (vr(t[15]), vr(t[15]), vr(t[9])))
    e('v_lshlrev_b32 %s, 4, %s' % (vr(t[15]), vr(t[15])))
    e('v_lshl_add_u32 %s, %s, 7, %s' % (vr(vPX), vr(t[14]), vr(t[15])))
    e('v_add_u32 %s, %s, %s' % (vr(vPX), sr(sLdsW), vr(vPX)))
    st = sSpin
    e('s_mul_i32 %s, %s, %d' % (sr(sW2), sr(sWave), 28 * 16384))
    e('s_lshl_b32 %s, %s, 7' % (sr(sT0), sr(sCT)))
    e('s_add_u32 %s, %s, %s' % (sr(sW2), sr(sW2), sr(sT0)))
    e('s_lshl_b32 %s, %s, 17' % (sr(sWO), sr(sWave)))
    e('s_add_u32 %s, %s, %s' % (sr(sWO), sr(sWO), sr(sT0)))
    e('s_mul_i32 %s, %s, %d' % (sr(sT0), sr(sRT), 2 * H_RT))
    e('s_mul_i32 %s, %s, %d' % (sr(sHld), sr(sWave), 28 * 1024))
    e('s_add_u32 %s, %s, %s' % (sr(sHld), sr(sHld), sr(sT0)))
    e('s_lshl_b32 %s, %s, 13' % (sr(sHlo), sr(sWave)))
    e('s_add_u32 %s, %s, %s' % (sr(sHlo), sr(sHlo), sr(sT0)))
    e('s_add_u32 %s, %s, %d' % (sr(sHlo), sr(sHlo), 112 * 1024))
    e('s_lshl_b32 %s, %s, 2' % (sr(sT0), sr(sRB)))
    e('s_add_u32 %s, %s, %s' % (sr(sT0), sr(sT0), sr(sWave)))
    e('s_mul_i32 %s, %s, %d' % (sr(sHst), sr(sT0), H_RT))
    e('s_lshl_b32 %s, %s, 13' % (sr(sKVb), sr(sHG)))
    e('s_add_u32 %s, %s, %d' % (sr(sKVb), sr(sKVb), KV_OFF))
    e('s_lshl_b32 %s, %s, 2' % (sr(sT0), sr(sRB)))
    e('s_add_u32 %s, %s, %s' % (sr(sT0), sr(sT0), sr(st)))
    e('s_lshl_b32 %s, %s, 7' % (sr(sT0), sr(sT0)))
    e('s_lshl_b32 %s, %s, 2' % (sr(sT1), sr(sQ4)))
    e('s_add_u32 %s, %s, %s' % (sr(sFlagOwn), sr(sT0), sr(sT1)))
    e('s_add_u32 %s, %s, %d' % (sr(sFlagOwn), sr(sFlagOwn), FLG_OFF))
    e('s_mul_i32 %s, %s, 448' % (sr(sT2), sr(st)))
    return xit


MASK16 = 84
sEps = 86
sPoll = 87

class Path:
    def __init__(self, e, typ, cfg, xit):
        self.e, self.typ, self.cfg, self.xit = e, typ, cfg, xit
        self.lab = typ
        self.nlab = 0
    def L(self, nm):
        self.nlab += 1
        return 'L_%s_%s_%d' % (self.typ, nm, self.nlab)

    def w0_begin(self):
        e = self.e; lab = self.L('w0')
        e('s_cmp_lg_u32 %s, 0' % sr(sWave)); e('s_cbranch_scc1 %s' % lab)
        return lab
    def w0_end(self, lab): self.e.label(lab)

    def store_flag(self, soff_sreg, val, extra=0):
        e = self.e; lab = self.w0_begin()
        e('s_mov_b64 exec, 1')
        e('v_mov_b32 %s, %d' % (vr(vT[30]), extra)); e('v_mov_b32 %s, %d' % (vr(vT[31]), val))
        e.raw('buffer_store_dword %s, %s, %s, %s offen sc1' % (vr(vT[31]), vr(vT[30]), sr(S_WS, 4), sr(soff_sreg)))
        e('s_mov_b64 exec, -1')
        self.w0_end(lab)

    def poll_addr(self, kind):
        e = self.e
        va = vr(vT[29])
        if kind == 'cnt':
            e('v_mov_b32 %s, 0' % va); return S_DBG, '0', 1
        if kind == 'kv':
            e('v_lshlrev_b32 %s, 2, %s' % (va, vr(vLane)))
            e('s_lshl_b32 %s, %s, 7' % (sr(sPoll), sr(sHG))); e('s_add_u32 %s, %s, %d' % (sr(sPoll), sr(sPoll), KVF_OFF))
            return S_WS, sr(sPoll), 16
        e('v_lshrrev_b32 %s, 2, %s' % (va, vr(vLane))); e('v_lshlrev_b32 %s, 7, %s' % (va, va))
        e('v_and_b32 %s, 3, %s' % (vr(vT[28]), vr(vLane))); e('v_lshl_add_u32 %s, %s, 2, %s' % (va, vr(vT[28]), va))
        e('s_lshr_b32 %s, %s, 1' % (sr(sPoll), sr(sRT))); e('s_lshl_b32 %s, %s, 9' % (sr(sPoll), sr(sPoll)))
        e('s_add_u32 %s, %s, %d' % (sr(sPoll), sr(sPoll), FLG_OFF))
        return S_WS, sr(sPoll), 16
    def poll_issue(self, kind):
        e = self.e; lab = self.w0_begin()
        srd_, so, n = self.poll_addr(kind)
        e('s_mov_b64 exec, 0x%x' % ((1 << n) - 1))
        e.raw('buffer_load_dword v31, %s, %s, %s offen sc1' % (vr(vT[29]), sr(srd_, 4), so))
        e('s_mov_b64 exec, -1')
        self.w0_end(lab)
        self.poll_pos = e.vm_n
    def poll_check(self, kind):
        e = self.e; lab = self.w0_begin()
        n = min(63, e.vm_n - self.poll_pos)
        e('s_waitcnt vmcnt(%d)' % n)
        nl = 1 if kind == 'cnt' else 16
        full = (1 << nl) - 1
        thr = {'cnt': 256, 'kv': 1, 'early': 1, 'late': 2}[kind]
        loop = self.L('spin'); ok = self.L('ok')
        e('s_mov_b32 %s, 0' % sr(sSpin))
        e('s_mov_b64 exec, 0x%x' % full)
        e.label(loop)
        e('v_mov_b32 %s, %d' % (vr(vT[28]), thr))
        e('v_cmp_le_u32 vcc, %s, v31' % vr(vT[28]))
        e('s_cmp_eq_u64 vcc, 0x%x' % full)
        e('s_cbranch_scc1 %s' % ok)
        e('s_add_u32 %s, %s, 1' % (sr(sSpin), sr(sSpin)))
        e('s_cmp_ge_u32 %s, %d' % (sr(sSpin), self.cfg.get('spin', 20000)))
        e('s_cbranch_scc1 %s' % ok)
        e('s_sleep 1')
        srd_, so, _ = self.poll_addr(kind)
        e.raw('buffer_load_dword v31, %s, %s, %s offen sc1' % (vr(vT[29]), sr(srd_, 4), so))
        e('s_waitcnt vmcnt(0)')
        e('s_branch %s' % loop)
        e.label(ok)
        e('s_mov_b64 exec, -1')
        self.w0_end(lab)

    def set_raddr(self, kind, slot):
        e = self.e
        base = slot * SLOT
        if kind == 'gu':
            e('v_add_u32 %s, %d, %s' % (vr(vR[0]), base, vr(vPGU)))
            for j in range(1, 4): e('v_xor_b32 %s, %d, %s' % (vr(vR[j]), 32 * j, vr(vR[0])))
        elif kind in ('kv', 'q'):
            e('v_add_u32 %s, %d, %s' % (vr(vR[0]), base, vr(vPKV)))
            e('v_xor_b32 %s, 64, %s' % (vr(vR[1]), vr(vR[0])))
        elif kind == 'half':
            e('v_add_u32 %s, %d, %s' % (vr(vR[0]), base, vr(vPH)))
            e('v_xor_b32 %s, 32, %s' % (vr(vR[1]), vr(vR[0])))

    def ts_desc(self, i):
        u = self.units
        if i < 128: kind, loc = u[0], i
        elif i < 256: kind, loc = u[1], i - 128
        else: kind, loc = u[2], i - 256
        if kind in ('gu', 'kv'):
            k, j = loc >> 2, loc & 3
            tq = k & 3
            if kind == 'gu': return kind, k, j, vR[j], tq * 4096, 512
            return kind, k, j, vR[j & 1], tq * 4096 + (j >> 1) * 2048, 512
        k, j = loc >> 1, loc & 1
        kk = k & 7
        if kind == 'q': return kind, k, j, vR[j], kk * 2048, 512
        return kind, k, j, vR[j], kk * 2048, 256

    def reads(self, i):
        e = self.e
        kind, k, j, areg, off, d2 = self.ts_desc(i)
        b = AW1 + (i % 8) * 4
        e('ds_read_b64_tr_b16 %s, %s offset:%d' % (ar(b, 2), vr(areg), off))
        e('ds_read_b64_tr_b16 %s, %s offset:%d' % (ar(b + 2, 2), vr(areg), off + d2), tag='rd%d' % i)

    def mfma(self, i):
        e = self.e
        kind, k, j, areg, off, d2 = self.ts_desc(i)
        b = AW1 + (i % 8) * 4
        acc = vr(ACC + 16 * j, 16)
        c = '0' if k == 0 else acc
        e.wait_lg('rd%d' % i)
        if kind == 'kv':
            e('v_mfma_f32_32x32x16_bf16 %s, %s, %s, %s' % (acc, vr(XF + 4 * k, 4), ar(b, 4), c))
        else:
            e('v_mfma_f32_32x32x16_bf16 %s, %s, %s, %s' % (acc, ar(b, 4), vr(XF + 4 * k, 4), c))

    def norm_instrs(self, k):
        out = []
        T = [vT[0], vT[2], vT[4], vT[6]]
        x = [XF + 4 * k + r for r in range(4)]
        def dot(r): return ['v_dot2_f32_bf16 %s, %s, %s, %s' % (vr(T[r]), vr(x[r]), sr(sLo), vr(vNM)),
                            'v_dot2_f32_bf16 %s, %s, %s, %s' % (vr(T[r] + 1), vr(x[r]), sr(sHi), vr(vNM))]
        def mul(r): return ['v_pk_mul_f32 %s, %s, %s op_sel_hi:[1,0]' % (vr(T[r], 2), vr(T[r], 2), vr(vRS, 2))]
        def cvt(r): return ['v_cvt_pk_bf16_f32 %s, %s, %s' % (vr(x[r]), vr(T[r]), vr(T[r] + 1))]
        out += dot(0) + dot(1) + dot(2) + dot(3)
        out += mul(0) + mul(1) + mul(2) + mul(3) + cvt(0) + cvt(1) + cvt(2) + cvt(3)
        return out

    def ffn_epilogue(self, ntiles, sK):
        e = self.e
        for j in range(ntiles):
            a = ACC + 16 * j
            T = vT[(j & 1) * 16:(j & 1) * 16 + 16]
            for q in range(4): e('v_pk_mul_f32 %s, %s, %s' % (vr(T[2 * q], 2), vr(a + 2 * q, 2), vr(a + 8 + 2 * q, 2)))
            for q in range(4): e('v_cvt_pk_bf16_f32 %s, %s, %s' % (vr(T[8 + q]), vr(T[2 * q]), vr(T[2 * q + 1])))
            e('s_add_u32 %s, %s, %d' % (sr(sT1), sr(sK), j * 1024))
            e('buffer_store_dwordx4 %s, %s, %s, %s offen sc1' % (vr(T[8], 4), vr(vL16), sr(S_WS, 4), sr(sT1)))
        self.last_store = e.vm_idx()

    def phi(self, r):
        e = self.e
        t0, t1 = 26, 27
        return ['v_mul_f32 v%d, 0x3fb8aa3b, %s' % (t0, vr(r)),
                'v_min_f32 v%d, 0, v%d' % (t0, t0),
                'v_exp_f32 v%d, v%d' % (t0, t0),
                'v_max_f32 %s, 0, %s' % (vr(r), vr(r)),
                'v_add_f32 %s, 0x358637bd, %s' % (vr(r), vr(r)),
                'v_add_f32 %s, %s, v%d' % (vr(r), vr(r), t0)]

    def phi_block(self, regs):
        e = self.e
        tm = [26, 27, 28, 29]
        n = len(regs)
        for g in range(0, n, 4):
            rs = regs[g:g + 4]
            for q, r in enumerate(rs): e('v_mul_f32 v%d, 0x3fb8aa3b, %s' % (tm[q], vr(r)))
            for q, r in enumerate(rs): e('v_min_f32 v%d, 0, v%d' % (tm[q], tm[q]))
            for q, r in enumerate(rs): e('v_exp_f32 v%d, v%d' % (tm[q], tm[q]))
            for q, r in enumerate(rs): e('v_max_f32 %s, 0, %s' % (vr(r), vr(r)))
            for q, r in enumerate(rs): e('v_add_f32 %s, 0x358637bd, %s' % (vr(r), vr(r)))
            for q, r in enumerate(rs): e('v_add_f32 %s, %s, v%d' % (vr(r), vr(r), tm[q]))

    def four_way(self, fn, name):
        e = self.e
        labs = [self.L(name + str(w)) for w in range(4)]
        end = self.L(name + 'end')
        e('s_cmp_eq_u32 %s, 1' % sr(sWave)); e('s_cbranch_scc1 %s' % labs[1])
        e('s_cmp_eq_u32 %s, 2' % sr(sWave)); e('s_cbranch_scc1 %s' % labs[2])
        e('s_cmp_eq_u32 %s, 3' % sr(sWave)); e('s_cbranch_scc1 %s' % labs[3])
        st = (e.vm_n, e.vm_done, dict(e.vm_tag), e.lg_n, e.lg_done, dict(e.lg_tag))
        fin = None
        for w in range(4):
            e.vm_n, e.vm_done, e.vm_tag, e.lg_n, e.lg_done, e.lg_tag = st[0], st[1], dict(st[2]), st[3], st[4], dict(st[5])
            e.label(labs[w])
            e('s_nop 7'); e('s_nop 7')
            fn(e, w)
            if w < 3: e('s_branch %s' % end)
            cur = (e.vm_n, e.lg_n)
            assert fin is None or fin == cur, (fin, cur)
            fin = cur
        e.label(end)
        e('s_nop 7'); e('s_nop 7')

    def kv_epilogue(self, slot):
        e = self.e
        for c in range(2):
            self.phi_block([ACC + 16 * c + r for r in range(16)])
            for q in range(8): e('v_cvt_pk_bf16_f32 %s, %s, %s' % (vr(vT[8 * c + q]), vr(ACC + 16 * c + 2 * q), vr(ACC + 16 * c + 2 * q + 1)))
        for c in range(2):
            for q in range(8): e('v_cvt_pk_bf16_f32 %s, %s, %s' % (vr(vT[16 + 8 * c + q]), vr(ACC + 32 + 16 * c + 2 * q), vr(ACC + 32 + 16 * c + 2 * q + 1)))
        for q in range(4): e('v_mov_b32 v%d, %s' % (26 + q, sr(sOnes)))
        for c in range(2):
            for ks in range(2):
                kf = vr(vT[8 * c + 4 * ks], 4); vf = vr(vT[16 + 8 * c + 4 * ks], 4)
                d = vr(ACC + 16 * c, 16); dz = vr(ACC + 32 + 16 * c, 16)
                e('v_mfma_f32_32x32x16_bf16 %s, %s, %s, %s' % (d, kf, vf, '0' if ks == 0 else d))
                e('v_mfma_f32_32x32x16_bf16 %s, %s, v[26:29], %s' % (dz, kf, '0' if ks == 0 else dz))
        for c in range(2):
            for r in range(8):
                e('v_cndmask_b32 %s, %s, %s, %s' % (vr(ACC + 16 * c + r), vr(ACC + 16 * c + 8 + r), vr(ACC + 16 * c + r), sr(MASK16, 2)))
        base = slot * SLOT
        e('v_lshrrev_b32 %s, 5, %s' % (vr(vT[0]), vr(vLane)))
        e('v_lshlrev_b32 %s, 5, %s' % (vr(vT[0]), vr(vT[0])))
        e('s_lshl_b32 %s, %s, 8' % (sr(sT1), sr(sWave)))
        e('s_add_u32 %s, %s, %d' % (sr(sT1), sr(sT1), base))
        e('v_add_u32 %s, %s, %s' % (vr(vT[0]), sr(sT1), vr(vT[0])))
        e('s_mov_b32 exec_lo, 1'); e('s_mov_b32 exec_hi, 1')
        for c in range(2):
            for b in range(2):
                for qd in range(2):
                    e('ds_write_b128 %s, %s offset:%d' % (vr(vT[0]), vr(ACC + 32 + 16 * c + 8 * b + 4 * qd, 4), (c * 2 + b) * 64 + qd * 16))
        e('s_mov_b64 exec, -1')
        def chunk(q): return ACC + 16 * (q >> 1) + 4 * (q & 1)
        def var1(e, w):
            for q in range(4):
                if q == w: continue
                pos = (w - q) & 3
                e('v_add_u32 %s, %d, %s' % (vr(vT[1]), base + q * 4096 + pos * 1024, vr(vL16)))
                e('ds_write_b128 %s, %s' % (vr(vT[1]), vr(chunk(q), 4)))
            e('s_waitcnt lgkmcnt(0)'); e.lg_done = e.lg_n - 1
            e('s_barrier')
            e('v_add_u32 %s, %d, %s' % (vr(vT[1]), base + w * 4096, vr(vL16)))
            for pos in range(1, 4): e('ds_read_b128 %s, %s offset:%d' % (vr(vT[4 * pos], 4), vr(vT[1]), pos * 1024))
            e('s_waitcnt lgkmcnt(0)'); e.lg_done = e.lg_n - 1
            own = chunk(w)
            for r in range(4):
                e('v_add_f32 %s, %s, %s' % (vr(vT[4 + r]), vr(vT[4 + r]), vr(vT[8 + r])))
                e('v_add_f32 %s, %s, %s' % (vr(vT[12 + r]), vr(vT[12 + r]), vr(own + r)))
                e('v_add_f32 %s, %s, %s' % (vr(vT[4 + r]), vr(vT[4 + r]), vr(vT[12 + r])))
            e('v_lshlrev_b32 %s, 2, %s' % (vr(vT[2]), vr(vLane)))
            e('s_add_u32 %s, %s, %d' % (sr(sT1), sr(sKVb), w * 1024))
            for r in range(4):
                e('buffer_atomic_add_f32 %s, %s, %s, %s offen offset:%d' % (vr(vT[4 + r]), vr(vT[2]), sr(S_WS, 4), sr(sT1), r * 256))
            if w == 0:
                e('v_add_u32 %s, %d, %s' % (vr(vT[3]), base, vr(vT[2])))
                for ww in range(4): e.raw('ds_read_b32 %s, %s offset:%d' % (vr(vT[16 + ww]), vr(vT[3]), ww * 256))
                e('s_waitcnt lgkmcnt(0)')
                e('v_add_f32 %s, %s, %s' % (vr(vT[16]), vr(vT[16]), vr(vT[17])))
                e('v_add_f32 %s, %s, %s' % (vr(vT[18]), vr(vT[18]), vr(vT[19])))
                e('v_add_f32 %s, %s, %s' % (vr(vT[16]), vr(vT[16]), vr(vT[18])))
                e('s_add_u32 %s, %s, 4096' % (sr(sT1), sr(sKVb)))
                e.raw('buffer_atomic_add_f32 %s, %s, %s, %s offen' % (vr(vT[16]), vr(vT[2]), sr(S_WS, 4), sr(sT1)))
        self.four_way(var1, 'kvr')
        self.last_store = e.vm_idx()

    def kvacc_loads(self):
        e = self.e
        e('v_lshlrev_b32 %s, 2, %s' % (vr(vT[24]), vr(vLane)))
        for c in range(2):
            for qd in range(2):
                e('s_add_u32 %s, %s, %d' % (sr(sT1), sr(sKVb), (c * 2 + qd) * 1024))
                for r in range(4):
                    e('buffer_load_dword %s, %s, %s, %s offen offset:%d sc1' % (vr(96 + c * 8 + qd * 4 + r), vr(vT[24]), sr(S_WS, 4), sr(sT1), r * 256))
        e('v_bfe_u32 %s, %s, 4, 1' % (vr(vT[25]), vr(vLane)))
        e('v_xor_b32 %s, 1, %s' % (vr(vT[25]), vr(vT[25])))
        e('v_lshlrev_b32 %s, 6, %s' % (vr(vT[25]), vr(vT[25])))
        e('v_lshrrev_b32 %s, 5, %s' % (vr(vT[26]), vr(vLane)))
        e('v_lshl_add_u32 %s, %s, 5, %s' % (vr(vT[25]), vr(vT[26]), vr(vT[25])))
        e('s_add_u32 %s, %s, 4096' % (sr(sT1), sr(sKVb)))
        for c in range(2):
            for qd in range(2):
                e('buffer_load_dwordx4 %s, %s, %s, %s offen offset:%d sc1' % (vr(112 + c * 8 + qd * 4, 4), vr(vT[25]), sr(S_WS, 4), sr(sT1), c * 128 + qd * 16))
        self.kvacc_last = e.vm_idx()

    def q_epilogue(self):
        e = self.e
        for c in range(2):
            self.phi_block([ACC + 16 * c + r for r in range(16)])
            for q in range(8): e('v_cvt_pk_bf16_f32 %s, %s, %s' % (vr(vT[8 * c + q]), vr(ACC + 16 * c + 2 * q), vr(ACC + 16 * c + 2 * q + 1)))
        e.wait_vm(self.kvacc_last)
        for c in range(2):
            P = 96 + 8 * c; Z = 112 + 8 * c
            for q in range(4): e('v_cvt_pk_bf16_f32 %s, %s, %s' % (vr(P + q), vr(P + 2 * q), vr(P + 2 * q + 1)))
            for q in range(4): e('v_cvt_pk_bf16_f32 %s, %s, %s' % (vr(Z + q), vr(Z + 2 * q), vr(Z + 2 * q + 1)))
            for q in range(4):
                e('v_cndmask_b32 %s, %s, %s, %s' % (vr(P + 4 + q), vr(Z + q), vr(P + q), sr(MASK16, 2)))
                e('v_cndmask_b32 %s, %s, %s, %s' % (vr(Z + 4 + q), vr(P + q), vr(Z + q), sr(MASK16, 2)))
        for c in range(2):
            P = 96 + 8 * c; Z = 112 + 8 * c
            e('v_mfma_f32_32x32x16_bf16 %s, %s, %s, 0' % (vr(64, 16), vr(P + 4, 4), vr(vT[8 * c], 4)))
            e('v_mfma_f32_32x32x16_bf16 %s, %s, %s, 0' % (vr(80, 16), vr(Z + 4, 4), vr(vT[8 * c + 4], 4)))
            for b in range(2):
                D = 64 + 16 * b
                num = D + 8 * b; den = D + 8 * (1 - b)
                e('v_add_f32 v26, 0x358637bd, %s' % vr(den))
                e('v_rcp_f32 v26, v26')
                T = vT[16 + 8 * b:16 + 8 * b + 8]
                for q in range(4): e('v_pk_mul_f32 %s, %s, v[26:27] op_sel_hi:[1,0]' % (vr(num + 2 * q, 2), vr(num + 2 * q, 2)))
                for q in range(4): e('v_cvt_pk_bf16_f32 %s, %s, %s' % (vr(T[q]), vr(num + 2 * q), vr(num + 2 * q + 1)))
                e('s_add_u32 %s, %s, %d' % (sr(sT1), sr(sKC), (2 * c + b) * 1024))
                e('buffer_store_dwordx4 %s, %s, %s, %s offen sc1' % (vr(T[0], 4), vr(vL16), sr(S_WS, 4), sr(sT1)))
        self.last_store = e.vm_idx()

    def setup_type(self):
        e = self.e
        st = sSpin
        e('s_mul_i32 %s, %s, 448' % (sr(sT2), sr(st)))
        if self.typ == 'Q':
            self.units = ['gu', 'gu', 'q']
            e('s_cmp_eq_u32 %s, 3' % sr(sQ4)); e('s_cselect_b32 %s, 320, 0' % sr(sT1))
            e('s_add_u32 %s, %s, %s' % (sr(sT2), sr(sT2), sr(sT1)))
            e('s_mul_i32 %s, %s, %d' % (sr(sA), sr(sWave), 16 * 3584))
            e('s_lshl_b32 %s, %s, 1' % (sr(sT1), sr(sT2)))
            e('s_add_u32 %s, %s, %s' % (sr(sA), sr(sA), sr(sT1)))
            e('s_add_u32 %s, %s, 128' % (sr(sB), sr(sA)))
            e('s_mul_i32 %s, %s, %d' % (sr(sC), sr(sWave), 32 * 3072))
            e('s_lshl_b32 %s, %s, 7' % (sr(sT1), sr(sHG)))
            e('s_add_u32 %s, %s, %s' % (sr(sC), sr(sC), sr(sT1)))
            e('s_lshl_b32 %s, %s, 6' % (sr(sT1), sr(sT2)))
            e('s_add_u32 %s, %s, %s' % (sr(sKA), sr(sHst), sr(sT1)))
            e('s_add_u32 %s, %s, 4096' % (sr(sKB), sr(sKA)))
            e('s_lshl_b32 %s, %s, 12' % (sr(sT1), sr(sHG)))
            e('s_add_u32 %s, %s, %s' % (sr(sKC), sr(sHst), sr(sT1)))
            e('s_add_u32 %s, %s, %d' % (sr(sKC), sr(sKC), 112 * 1024))
            self.w = [gu_item('A', sA, p) for p in range(8)] + [gu_item('B', sB, p) for p in range(8)] + [q_item(sC, p) for p in range(4)]
        else:
            self.units = ['kv', 'gu', 'half']
            e('s_cmp_eq_u32 %s, 1' % sr(sQ4)); e('s_cselect_b32 %s, 128, 256' % sr(sT1)) if False else None
            e('s_cmp_eq_u32 %s, 1' % sr(sQ4))
            e('s_movk_i32 %s, 256' % sr(sT1)); e('s_cselect_b32 %s, 128, %s' % (sr(sT1), sr(sT1)))
            e('s_movk_i32 %s, 224' % sr(sT3)); e('s_cselect_b32 %s, 192, %s' % (sr(sT3), sr(sT3)))
            e('s_add_u32 %s, %s, %s' % (sr(sT1), sr(sT1), sr(sT2)))
            e('s_add_u32 %s, %s, %s' % (sr(sT3), sr(sT3), sr(sT2)))
            e('s_mul_i32 %s, %s, %d' % (sr(sA), sr(sWave), 16 * 3072))
            e('s_lshl_b32 %s, %s, 7' % (sr(sT2), sr(sHG)))
            e('s_add_u32 %s, %s, %s' % (sr(sA), sr(sA), sr(sT2)))
            e('s_add_u32 %s, %s, 1024' % (sr(sA), sr(sA)))
            e('s_mul_i32 %s, %s, %d' % (sr(sB), sr(sWave), 16 * 3584))
            e('s_lshl_b32 %s, %s, 1' % (sr(sT2), sr(sT1)))
            e('s_add_u32 %s, %s, %s' % (sr(sB), sr(sB), sr(sT2)))
            e('s_mul_i32 %s, %s, %d' % (sr(sC), sr(sWave), 32 * 3584))
            e('s_lshl_b32 %s, %s, 1' % (sr(sT2), sr(sT3)))
            e('s_add_u32 %s, %s, %s' % (sr(sC), sr(sC), sr(sT2)))
            e('s_lshl_b32 %s, %s, 6' % (sr(sT2), sr(sT1)))
            e('s_add_u32 %s, %s, %s' % (sr(sKB), sr(sHst), sr(sT2)))
            e('s_lshl_b32 %s, %s, 6' % (sr(sT2), sr(sT3)))
            e('s_add_u32 %s, %s, %s' % (sr(sKC), sr(sHst), sr(sT2)))
            self.w = [kv_item(sA, p) for p in range(8)] + [gu_item('B', sB, p) for p in range(8)] + [half_item(sC, p) for p in range(4)]
        for p, it in enumerate(self.w): it.slot = p % 6
        self.v = [w2_item(k) for k in range(18)]
        for k, it in enumerate(self.v): it.slot = 6 + (k % 4)

    def clears(self):
        e = self.e
        lab = self.w0_begin()
        e('s_mov_b64 exec, 1')
        e('v_mov_b32 %s, 0' % vr(vT[30]))
        e.raw('buffer_store_dword %s, %s, %s, %s offen sc1' % (vr(vT[30]), vr(vT[30]), sr(S_WS, 4), sr(sFlagOwn)))
        if self.typ == 'KV':
            e('s_lshl_b32 %s, %s, 7' % (sr(sT1), sr(sHG))); e('s_lshl_b32 %s, %s, 2' % (sr(sT2), sr(sRB)))
            e('s_add_u32 %s, %s, %s' % (sr(sT1), sr(sT1), sr(sT2))); e('s_add_u32 %s, %s, %d' % (sr(sPoll + 1), sr(sT1), KVF_OFF))
            e.raw('buffer_store_dword %s, %s, %s, %s offen sc1' % (vr(vT[30]), vr(vT[30]), sr(S_WS, 4), sr(sPoll + 1)))
        e('s_mov_b64 exec, -1')
        self.w0_end(lab)
        if self.typ == 'KV':
            e('s_lshl_b32 %s, %s, 7' % (sr(sT1), sr(sHG))); e('s_lshl_b32 %s, %s, 2' % (sr(sT2), sr(sRB)))
            e('s_add_u32 %s, %s, %s' % (sr(sT1), sr(sT1), sr(sT2))); e('s_add_u32 %s, %s, %d' % (sr(sPoll + 1), sr(sT1), KVF_OFF))
            lab = self.L('noclr')
            e('s_cmp_lg_u32 %s, 0' % sr(sRB)); e('s_cbranch_scc1 %s' % lab)
            for q in range(4): e('v_mov_b32 %s, 0' % vr(vT[24 + q]))
            e('s_add_u32 %s, %s, %s' % (sr(sT1), sr(sKVb), sr(sLdsW)))
            e('s_lshl_b32 %s, %s, 10' % (sr(sT2), sr(sWave)))
            e('s_add_u32 %s, %s, %s' % (sr(sT1), sr(sKVb), sr(sT2)))
            e.raw('buffer_store_dwordx4 %s, %s, %s, %s offen sc1' % (vr(vT[24], 4), vr(vL16), sr(S_WS, 4), sr(sT1)))
            e('s_add_u32 %s, %s, 4096' % (sr(sT1), sr(sKVb)))
            e('s_mov_b64 exec, 0xffff')
            e.raw('buffer_store_dwordx4 %s, %s, %s, %s offen sc1' % (vr(vT[24], 4), vr(vL16), sr(S_WS, 4), sr(sT1)))
            e('s_mov_b64 exec, -1')
            e.label(lab)

    def x_phase(self):
        e = self.e
        nxt = [self.w[2], self.w[3], self.w[4], self.w[5], self.v[0], self.v[1], self.v[2], self.v[3]]
        SQ = [vT[8], vT[9], vT[10], vT[11]]
        for q in range(4):
            e('v_mov_b32 %s, 0' % vr(vSUM[q])); e('v_mov_b32 %s, 0' % vr(SQ[q]))
        def sums(c):
            e.wait_lg('xr%d' % c)
            for r in range(16):
                x = XF + 16 * c + r
                e('v_dot2c_f32_bf16 %s, %s, %s' % (vr(vSUM[r & 3]), sr(sOnes), vr(x)))
                e('v_dot2c_f32_bf16 %s, %s, %s' % (vr(SQ[r & 3]), vr(x), vr(x)))
        for c in range(8):
            it = self.xit[c]
            e.wait_vm(it.last_vm)
            if c == 0: ST(e, 'x0')
            if c == 7: ST(e, 'x7')
            e('v_add_u32 %s, %d, %s' % (vr(vR[0]), it.slot * SLOT, vr(vPX)))
            for k in range(1, 4): e('v_xor_b32 %s, %d, %s' % (vr(vR[k]), 32 * k, vr(vR[0])))
            for k in range(4):
                e('ds_read_b128 %s, %s' % (vr(XF + 16 * c + 4 * k, 4), vr(vR[k])), tag='xr%d' % c)
            if c > 0:
                e.wait_lg('xr%d' % (c - 1))
                for i in range(4): emit_dma(e, nxt[c - 1], i)
                sums(c - 1)
        e.wait_lg('xr7')
        for i in range(4): emit_dma(e, nxt[7], i)
        sums(7)
        for A4 in (vSUM, SQ):
            e('v_add_f32 %s, %s, %s' % (vr(A4[0]), vr(A4[0]), vr(A4[1])))
            e('v_add_f32 %s, %s, %s' % (vr(A4[2]), vr(A4[2]), vr(A4[3])))
            e('v_add_f32 %s, %s, %s' % (vr(A4[0]), vr(A4[0]), vr(A4[2])))
            e('v_mov_b32 %s, %s' % (vr(A4[1]), vr(A4[0])))
        for A4 in (vSUM, SQ):
            e('v_permlane32_swap_b32 %s, %s' % (vr(A4[0]), vr(A4[1])))
        for A4 in (vSUM, SQ):
            e('v_add_f32 %s, %s, %s' % (vr(A4[0]), vr(A4[0]), vr(A4[1])))
        e('v_mul_f32 %s, 0xbb000000, %s' % (vr(vNM), vr(vSUM[0])))
        e('v_mul_f32 %s, 0x3b000000, %s' % (vr(SQ[0]), vr(SQ[0])))
        e('v_fma_f32 %s, -%s, %s, %s' % (vr(SQ[0]), vr(vNM), vr(vNM), vr(SQ[0])))
        e('v_max_f32 %s, 0, %s' % (vr(SQ[0]), vr(SQ[0])))
        e('v_add_f32 %s, 0x3727c5ac, %s' % (vr(SQ[0]), vr(SQ[0])))
        e('v_rsq_f32 %s, %s' % (vr(vRS), vr(SQ[0])))

    def barrier_stage(self, p):
        e = self.e
        e.wait_vm(self.w[p].last_vm)
        if p in self.pre_barrier_waits:
            for idx in self.pre_barrier_waits[p](): e.wait_vm(idx)
        e('s_barrier')
        ST(e, 'B%d' % p)
        self.set_raddr(self.units[min(p // 8, 2)], self.w[p].slot)
        for f in self.post_barrier.get(p, []): f()

    def v_reads(self, k, part):
        e = self.e
        it = self.v[k]
        if part == 0:
            e.wait_vm(it.last_vm)
            e('v_add_u32 %s, %d, %s' % (vr(vRW[0]), it.slot * SLOT, vr(vPW2)))
            e('v_xor_b32 %s, 64, %s' % (vr(vRW[1]), vr(vRW[0])))
        step = 2 * k + (part >> 1); c = part & 1
        b = AW2 + step * 8 + c * 4
        off = (part >> 1) * 2048
        e('ds_read_b64_tr_b16 %s, %s offset:%d' % (ar(b, 2), vr(vRW[c]), off))
        e('ds_read_b64_tr_b16 %s, %s offset:%d' % (ar(b + 2, 2), vr(vRW[c]), off + 1024), tag='v%d_%d' % (k, part))

    def phase1(self):
        e = self.e; cfg = self.cfg
        self.setup_type()
        self.clears()
        for p in (0, 1):
            for i in range(4): emit_dma(e, self.w[p], i)
        e('s_mov_b32 %s, 0x0000ffff' % sr(MASK16)); e('s_mov_b32 %s, 0x0000ffff' % sr(MASK16 + 1))
        self.x_phase()
        self.pre_barrier_waits = {}
        self.post_barrier = {}
        gap = {i: [] for i in range(-LA, 321)}
        def at(i, f): gap[i].append(f)
        for p in range(2, 16):
            pos0 = 16 * p - LA
            if self.typ == 'KV' and p == 8: continue
            for i in range(4): at(pos0 + 1 + 2 * i, (lambda it=self.w[p + 4], i=i: emit_dma(e, it, i)))
        for k in range(14):
            pos0 = 16 * (k + 3) - LA
            for part in range(4): at(pos0 + 2 + 2 * part, (lambda k=k, part=part: self.v_reads(k, part)))
            if k + 4 < 18:
                def issue(k=k, i=0):
                    e.wait_lg('v%d_3' % k); emit_dma(e, self.v[k + 4], i)
                for i in range(4): at(pos0 + 10 + i, (lambda k=k, i=i: issue(k, i)))
        def cnt_add():
            lab = self.w0_begin()
            e('s_mov_b64 exec, 1')
            e('v_mov_b32 %s, 0' % vr(vT[30])); e('v_mov_b32 %s, 1' % vr(vT[31]))
            e.raw('buffer_atomic_add %s, %s, %s, 0 offen' % (vr(vT[31]), vr(vT[30]), sr(S_DBG, 4)))
            e('s_mov_b64 exec, -1')
            self.w0_end(lab)
        self.post_barrier[0] = [cnt_add]
        at(16 * 3 + 9, lambda: self.poll_issue('cnt'))
        at(16 * 6 + 9, lambda: self.poll_check('cnt'))
        stores = {}
        self.barrier_stage(0)
        for i in range(LA): self.reads(i)
        for s in self.norm_instrs(0): e(s)
        for i in range(320):
            self.mfma(i)
            if i + LA < 320:
                if (i + LA) % 16 == 0: self.barrier_stage((i + LA) // 16)
                self.reads(i + LA)
            if i < 128:
                k = i >> 2
                if k + 1 < 32:
                    ni = self.norm_instrs(k + 1)
                    for s in ni[(i & 3) * 4:(i & 3) * 4 + 4]: e(s)
            for f in gap[i]: f()
            if i == 127: ST(e, 'u0')
            if i == 255: ST(e, 'u1')
            if i == 319: ST(e, 'u2')
            if i == 127:
                if self.typ == 'Q':
                    self.ffn_epilogue(4, sKA)
                else:
                    self.kv_epilogue(self.w[12].slot)
                    kv_last = self.last_store
                    for ii in range(4): emit_dma(e, self.w[12], ii)
                    self.pre_barrier_waits[11] = lambda: [kv_last]
                    self.post_barrier[11] = [lambda: self.store_flag(sPoll + 1, 1)]
            if i == 255:
                self.ffn_epilogue(4, sKB)
                early_last = self.last_store
                self.pre_barrier_waits[19] = lambda: [early_last]
                self.post_barrier[19] = [lambda: self.store_flag(sFlagOwn, 1)]
            if self.typ == 'Q':
                if i == 16 * 14: self.poll_issue('kv')
                if i == 16 * 16 + 4: self.poll_check('kv')
                if i == 16 * 17 - LA + 1: self.kvacc_loads()

            if i == 300: self.poll_issue('early')
        self.gemm2()

    def h_load(self, st):
        e = self.e
        for b in range(2):
            r = XF + (st % 16) * 8 + 4 * b
            if st < 24: base, off = sHld, EARLY_REL[st] * 1024
            elif st < 28: base, off = sHld, LATE_REL[st - 24] * 1024
            else: base, off = sHlo, (st - 28) * 1024
            e('s_add_u32 %s, %s, %d' % (sr(sT1), sr(base), off + b * H_RT))
            e('buffer_load_dwordx4 %s, %s, %s, %s offen sc1' % (vr(r, 4), vr(vL16), sr(S_WS, 4), sr(sT1)), tag='h%d_%d' % (st, b))

    def w2_lds_reads(self, st):
        e = self.e
        it = self.v[st // 2]
        if st % 2 == 0:
            e('v_add_u32 %s, %d, %s' % (vr(vRW[0]), it.slot * SLOT, vr(vPW2)))
            e('v_xor_b32 %s, 64, %s' % (vr(vRW[1]), vr(vRW[0])))
        for c in range(2):
            b = AW1 + (st % 4) * 8 + c * 4
            off = (st & 1) * 2048
            e('ds_read_b64_tr_b16 %s, %s offset:%d' % (ar(b, 2), vr(vRW[c]), off))
            e('ds_read_b64_tr_b16 %s, %s offset:%d' % (ar(b + 2, 2), vr(vRW[c]), off + 1024), tag='w2r%d_%d' % (st, c))

    def gemm2(self):
        e = self.e; cfg = self.cfg
        self.poll_check('early')
        e('s_barrier')
        ST(e, 'g0')
        for st in range(16): self.h_load(st)
        XR = vT[16]
        if self.typ == 'Q': self.q_epilogue()
        else: self.ffn_epilogue(2, sKC)
        late_last = self.last_store
        e('v_and_b32 %s, 31, %s' % (vr(vT[0]), vr(vLane)))
        e('v_lshlrev_b32 %s, 10, %s' % (vr(vT[0]), vr(vT[0])))
        e('v_lshrrev_b32 %s, 5, %s' % (vr(vT[1]), vr(vLane)))
        e('v_lshl_add_u32 %s, %s, 4, %s' % (vr(vT[0]), vr(vT[1]), vr(vT[0])))
        e('s_lshl_b32 %s, %s, 16' % (sr(sT2), sr(sRT)))
        e('s_and_b32 %s, %s, 1' % (sr(sT3), sr(sWave))); e('s_lshl_b32 %s, %s, 15' % (sr(sT3), sr(sT3)))
        e('s_add_u32 %s, %s, %s' % (sr(sT2), sr(sT2), sr(sT3)))
        e('s_lshl_b32 %s, %s, 7' % (sr(sT3), sr(sCT))); e('s_add_u32 %s, %s, %s' % (sr(sT2), sr(sT2), sr(sT3)))
        e('s_lshr_b32 %s, %s, 1' % (sr(sT3), sr(sWave))); e('s_lshl_b32 %s, %s, 6' % (sr(sT3), sr(sT3)))
        e('s_add_u32 %s, %s, %s' % (sr(sA), sr(sT2), sr(sT3)))
        e('buffer_load_dwordx4 %s, %s, %s, %s offen' % (vr(vT[16], 4), vr(vT[0]), sr(S_X, 4), sr(sA)))
        e('buffer_load_dwordx4 %s, %s, %s, %s offen offset:32' % (vr(vT[20], 4), vr(vT[0]), sr(S_X, 4), sr(sA)), tag='resid')
        e.wait_vm(self.v[17].last_vm)
        for st in range(36):
            if st + 2 >= 28 and st + 2 < 36 and st >= 26: self.w2_lds_reads(st + 2)
            e.wait_vm('h%d_1' % st)
            for a in range(2):
                if st < 28: wf = ar(AW2 + st * 8 + 4 * a, 4)
                else:
                    e.wait_lg('w2r%d_%d' % (st, a)); wf = ar(AW1 + (st % 4) * 8 + 4 * a, 4)
                for b in range(2):
                    acc = vr(ACC + 16 * (2 * a + b), 16)
                    e('v_mfma_f32_32x32x16_bf16 %s, %s, %s, %s' % (acc, wf, vr(XF + (st % 16) * 8 + 4 * b, 4), '0' if st == 0 else acc))
            if st in (0, 4, 8, 10, 12, 16, 20, 24, 28, 32): ST(e, 'G%d' % st)
            if st < 8: self.h_load(st + 16)
            if st == 4:
                e.wait_vm(late_last); e('s_barrier'); self.store_flag(sFlagOwn, 2)
            if st == 6: self.poll_issue('late')
            if st == 10:
                self.poll_check('late'); e('s_barrier')
                for s2 in range(24, 24 + 3): self.h_load(s2)
            if st > 10 and st + 16 < 36: self.h_load(st + 16)
        ST(e, 'g1')
        def fin(e, w):
            for q in range(4):
                if q == w: continue
                pos = (w - q) & 3
                e('v_add_u32 %s, %d, %s' % (vr(vT[1]), q * SLOT + pos * 4096, vr(vL16)))
                for i in range(4): e('ds_write_b128 %s, %s offset:%d' % (vr(vT[1]), vr(ACC + 16 * q + 4 * i, 4), i * 1024))
            e('s_waitcnt lgkmcnt(0)'); e.lg_done = e.lg_n - 1
            e('s_barrier')
            e('v_add_u32 %s, %d, %s' % (vr(vT[1]), w * SLOT, vr(vL16)))
            R = XF
            for pos in range(1, 4):
                for i in range(4): e('ds_read_b128 %s, %s offset:%d' % (vr(R + (pos - 1) * 16 + 4 * i, 4), vr(vT[1]), pos * 4096 + i * 1024))
            e.wait_vm('resid')
            X = vT[16]
            for jj in range(2):
                e('v_permlane32_swap_b32 %s, %s' % (vr(X + 4 * jj), vr(X + 4 * jj + 2)))
                e('v_permlane32_swap_b32 %s, %s' % (vr(X + 4 * jj + 1), vr(X + 4 * jj + 3)))
            own = ACC + 16 * w
            for r in range(16):
                e('v_dot2_f32_bf16 %s, %s, %s, %s' % (vr(own + r), vr(X + r // 2), sr(sLo if r % 2 == 0 else sHi), vr(own + r)))
            e('s_waitcnt lgkmcnt(0)'); e.lg_done = e.lg_n - 1
            for r in range(16): e('v_add_f32 %s, %s, %s' % (vr(R + r), vr(R + r), vr(R + 16 + r)))
            for r in range(16): e('v_add_f32 %s, %s, %s' % (vr(own + r), vr(own + r), vr(R + 32 + r)))
            for r in range(16): e('v_add_f32 %s, %s, %s' % (vr(own + r), vr(own + r), vr(R + r)))
            O = vT[24]
            for q in range(8): e('v_cvt_pk_bf16_f32 %s, %s, %s' % (vr(O + q), vr(own + 2 * q), vr(own + 2 * q + 1)))
            for jj in range(2):
                e('v_permlane32_swap_b32 %s, %s' % (vr(O + 4 * jj), vr(O + 4 * jj + 2)))
                e('v_permlane32_swap_b32 %s, %s' % (vr(O + 4 * jj + 1), vr(O + 4 * jj + 3)))
            e('buffer_store_dwordx4 %s, %s, %s, %s offen' % (vr(O, 4), vr(vT[0]), sr(S_OUT, 4), sr(sA)))
            e('buffer_store_dwordx4 %s, %s, %s, %s offen offset:32' % (vr(O + 4, 4), vr(vT[0]), sr(S_OUT, 4), sr(sA)))
        self.four_way(fin, 'fin')
        if ST.on:
            e('s_waitcnt vmcnt(0)')
            ST(e, 'rt1', real=True)
            ST.dump(e)
        e('s_endpgm')

HEADER = """; Kernarg layout for this problem (80 bytes, ptrs only, base s[0:1]):
;   offset   0: d_in[0] A_x ... offset 56: d_out, 64: d_debug, 72: d_ws
; Fused LayerNorm + linear attention + bilinear GLU.  Generated by a hand-written script (gen.py).
; @launch grid=(256,1,1) block=(256,1,1) lds=163840
.amdgcn_target "amdgcn-amd-amdhsa--gfx950"
.text
.globl %s
.p2align 8
.type %s,@function
%s:
""" % (NAME, NAME, NAME)

FOOTER = """
.section .rodata,"a"
.p2align 6
.amdhsa_kernel %s
  .amdhsa_next_free_vgpr 512
  .amdhsa_next_free_sgpr 102
  .amdhsa_accum_offset 256
  .amdhsa_group_segment_fixed_size 0
  .amdhsa_kernarg_size 80
  .amdhsa_user_sgpr_count 2
  .amdhsa_user_sgpr_kernarg_segment_ptr 1
  .amdhsa_system_sgpr_workgroup_id_x 1
.end_amdhsa_kernel
""" % NAME

def build(cfg=None):
    cfg = cfg or {}
    ST.on = bool(cfg.get('stamps')); ST.names = []; ST.sel = cfg.get('sel'); ST.dbgout = cfg.get('dbgout', 0); ST.nd = 0; ST.dbgwg = cfg.get('dbgwg', 0)
    e = Em()
    xit = prologue(e, cfg)
    e('s_cmp_eq_u32 %s, 1' % sr(sQ4)); e('s_cbranch_scc1 L_KV')
    e('s_cmp_eq_u32 %s, 2' % sr(sQ4)); e('s_cbranch_scc1 L_KV')
    import copy
    eq = e.fork(); ek = e.fork()
    xq = copy.deepcopy(xit); xk = copy.deepcopy(xit)
    ST.pending = None
    Path(eq, 'Q', cfg, xq).phase1()
    ST.pending = None
    Path(ek, 'KV', cfg, xk).phase1()
    body = e.L + eq.L + [Ins('L_KV:')] + ek.L + [Ins('L_end:'), Ins('s_endpgm'), Ins('L_codeend:')]
    body = pad_hazards(body)
    txt = '\n'.join(('' if i.kind == 'label' else '  ') + i.text for i in body)
    return HEADER + txt + '\n  .fill 320, 4, 0xbf800000\n' + FOOTER

if __name__ == '__main__':
    out = sys.argv[1] if len(sys.argv) > 1 else 'parallel_sum__linear_attn_block__glu_gated_bilinear__prompt.s'
    cfg = {}
    for a in sys.argv[2:]:
        k_, v_ = a.split('='); cfg[k_] = v_.split(',') if k_ == 'sel' else int(v_)
    open(out, 'w').write(build(cfg))
    print('written', out, ST.names)
```
